```python
import torch

def _softmax(x, axis=-1):
    return torch.softmax(x, dim=axis)

def _gelu(x):
    return torch.nn.functional.gelu(x, approximate='tanh')

def _silu(x):
    return torch.nn.functional.silu(x)

def _sigmoid(x):
    return torch.sigmoid(x)

def _layernorm(x, axis=-1, eps=1e-05):
    m = x.mean(dim=axis, keepdim=True)
    v = x.var(dim=axis, keepdim=True, unbiased=False)
    return (x - m) / torch.sqrt(v + eps)

def _scatter_add(tgt, idx, src, axis=0):
    return tgt.clone().index_add_(axis, idx, src)

def _segment_sum(src, seg, n):
    out = torch.zeros((n,) + src.shape[1:], dtype=src.dtype)
    return out.index_add_(0, seg, src)

def _pad(x, pw):
    flat = tuple((v for pair in reversed(pw) for v in pair))
    return torch.nn.functional.pad(x, flat)
kernel_name = 'concat_heads__memory_aug_recurrent_mem_tr__linear_attn_block__prompt'

def setup_inputs():

    _w = lambda a: (lambda t: t.to(torch.bfloat16) if t.is_floating_point() else t)(torch.as_tensor(a))

    def _A_setup():
        B, S, Dm = (1, 2048, 1024)
        H, Dh = (32, 128)
        M, seg = (8, 32)
        seg = min(seg, S)
        S = S // seg * seg
        return {'x': _w((lambda *s: torch.randn(*s, dtype=torch.bfloat16) * 0.05)(B, S, Dm)), 'mem0': _w((lambda *s: torch.randn(*s, dtype=torch.bfloat16) * 0.8)(B, M, Dm)), 'Wq': _w((lambda *s: torch.randn(*s, dtype=torch.bfloat16) * 3.2)(Dm, H, Dh) * Dm ** (-0.5)), 'Wk': _w((lambda *s: torch.randn(*s, dtype=torch.bfloat16) * 3.2)(Dm, H, Dh) * Dm ** (-0.5)), 'Wv': _w((lambda *s: torch.randn(*s, dtype=torch.bfloat16) * 0.8)(Dm, H, Dh) * Dm ** (-0.5)), 'Wo': _w((lambda *s: torch.randn(*s, dtype=torch.bfloat16) * 0.8)(H, Dh, Dm) * (H * Dh) ** (-0.5)), 'seg_len': seg}
    _A_in = _A_setup()

    def _B_setup():
        B, S, D = (1, 2048, 1024)
        return {'x': _w((lambda *s: torch.randn(*s, dtype=torch.bfloat16) * 0.05)(B, S, D)), 'wqkv': _w((lambda *s: torch.randn(*s, dtype=torch.bfloat16) * 0.8)(D, 3 * D)), 'wo': _w((lambda *s: torch.randn(*s, dtype=torch.bfloat16) * 0.1)(D, D))}
    _B_in = _B_setup()
    return {'A_x': _A_in['x'], 'A_mem0': _A_in['mem0'], 'A_Wq': _A_in['Wq'], 'A_Wk': _A_in['Wk'], 'A_Wv': _A_in['Wv'], 'A_Wo': _A_in['Wo'], 'A_seg_len': _A_in['seg_len'], 'B_x': _B_in['x'], 'B_wqkv': _B_in['wqkv'], 'B_wo': _B_in['wo']}

def reference(A_x, A_mem0, A_Wq, A_Wk, A_Wv, A_Wo, A_seg_len, B_x, B_wqkv, B_wo):

    def _A_ref(x, mem0, Wq, Wk, Wv, Wo, seg_len):
        B, S, Dm = x.shape
        H, Dh = (Wq.shape[1], Wq.shape[2])
        M = mem0.shape[1]
        scale = Dh ** (-0.5)
        n_seg = S // seg_len
        L = M + seg_len
        idx = torch.arange(L)
        mask = (idx[:, None] < M) | (idx[:, None] >= idx[None, :])
        mem = mem0
        outs = []
        for s in range(n_seg):
            xs = x[:, s * seg_len:(s + 1) * seg_len, :].clone()
            h = torch.concatenate([mem, xs], axis=1)
            q = torch.einsum('btd,dhe->bhte', h, Wq)
            k = torch.einsum('btd,dhe->bhte', h, Wk)
            v = torch.einsum('btd,dhe->bhte', h, Wv)
            scores = torch.einsum('bhqe,bhke->bhqk', q, k) * scale
            scores = torch.where(mask[None, None], scores, -1000000000.0)
            p = _softmax(scores, axis=-1)
            o = torch.einsum('bhqk,bhke->bhqe', p, v)
            o = torch.einsum('bhte,hed->btd', o, Wo)
            mem = o[:, :M, :].clone()
            outs.append(o[:, M:, :])
        return torch.concatenate(outs, axis=1)

    def _B_ref(x, wqkv, wo):
        B, S, D = x.shape
        H = 32
        Dh = D // H
        qkv = (lambda x, *d: x.permute(*d))((x @ wqkv).reshape(B, S, 3, H, Dh), 2, 0, 3, 1, 4)
        q, k, v = (qkv[0], qkv[1], qkv[2])
        phi = lambda t: torch.where(t > 0, t + 1, torch.exp(t)) + 1e-06
        pq, pk = (phi(q), phi(k))
        kv = torch.einsum('bhsd,bhse->bhde', pk, v)
        z = torch.einsum('bhsd->bhd', pk)
        num = torch.einsum('bhqd,bhde->bhqe', pq, kv)
        den = torch.einsum('bhqd,bhd->bhq', pq, z)[..., None] + 1e-06
        o = num / den
        return (lambda x, *d: x.permute(*d))(o, 0, 2, 1, 3).reshape(B, S, D) @ wo
    a = _A_ref(A_x, A_mem0, A_Wq, A_Wk, A_Wv, A_Wo, A_seg_len)
    b = _B_ref(B_x, B_wqkv, B_wo)
    return torch.concatenate([a, b], axis=-1)
```

```python
import re, sys

_REG = re.compile(r'^(-|abs\()?([vas])(\d+|\[(\d+):(\d+)\])\)?$')
def regs_of(op):
    op = op.strip()
    if op in ('vcc', 'vcc_lo', 'vcc_hi'): return {('s', 'vcc')}
    if op in ('exec', 'exec_lo', 'exec_hi'): return {('s', 'exec')}
    if op == 'm0': return {('s', 'm0')}
    op2 = op.replace('|', '')
    m = _REG.match(op2)
    if not m: return set()
    k = m.group(2)
    if m.group(4) is not None:
        return {(k, i) for i in range(int(m.group(4)), int(m.group(5)) + 1)}
    return {(k, int(m.group(3)))}

TRANS = ('v_exp_', 'v_log_', 'v_rcp_', 'v_rsq_', 'v_sqrt_', 'v_sin_', 'v_cos_')

class Ins:
    __slots__ = ('text', 'mn', 'ops', 'mods', 'kind', 'w', 'r', 'a', 'b', 'c', 'passes', 'states', 'target', 'uncond', 'sdata', 'label', 'auto')
    def __init__(self, text):
        self.text = text; self.label = None; self.auto = False
        t = text.split(';')[0].strip()
        self.w = set(); self.r = set(); self.a = set(); self.b = set(); self.c = set()
        self.passes = 0; self.states = 1; self.target = None; self.uncond = False; self.sdata = set()
        if t.endswith(':'):
            self.kind = 'label'; self.label = t[:-1]; self.states = 0; self.mn = ''; return
        if t.startswith('.') or not t:
            self.kind = 'dir'; self.states = 0; self.mn = ''; return
        p = t.split(None, 1)
        mn = self.mn = p[0]
        rest = p[1] if len(p) > 1 else ''
        parts = [x.strip() for x in re.split(r',\s*(?![^\[]*\])', rest)] if rest else []
        mods = ''
        if parts:
            q = parts[-1].split(None, 1)
            if len(q) > 1 and not parts[-1].startswith('hwreg'):
                parts[-1] = q[0]; mods = q[1]
        self.ops = parts; self.mods = mods
        R = [regs_of(x) for x in parts]
        U = lambda xs: set().union(*xs) if xs else set()
        if mn.startswith('v_mfma') or mn.startswith('v_smfmac'):
            self.kind = 'mfma'
            self.passes = 8 if '32x32' in mn else (2 if '4x4' in mn else 4)
            self.w = R[0]
            if mn.startswith('v_smfmac'):
                self.a = R[1] | R[3]; self.b = R[2]; self.c = R[0]
            else:
                self.a = R[1]; self.b = R[2]; self.c = R[3]
            self.r = self.a | self.b | self.c
        elif mn.startswith('v_'):
            self.kind = 'valu'
            if 'permlane' in mn and 'swap' in mn:
                self.w = R[0] | R[1]; self.r = R[0] | R[1]
            elif mn.startswith('v_nop'):
                pass
            elif re.match(r'v_(add|sub|subrev|addc|subb)_co', mn) or mn.startswith('v_mad_u64') or mn.startswith('v_div_scale'):
                self.w = R[0] | R[1]; self.r = U(R[2:])
            else:
                self.w = R[0]; self.r = U(R[1:])
                if mn.startswith(('v_fmac', 'v_dot2c', 'v_writelane')) or '_dpp' in mn or '_sdwa' in mn: self.r |= R[0]
                if mn.startswith('v_cndmask') and len(parts) == 3: self.r |= {('s', 'vcc')}
                if mn.startswith('v_cmpx'): self.w |= {('s', 'exec')}
        elif mn.startswith('ds_'):
            self.kind = 'ds'
            if mn.startswith(('ds_read', 'ds_bpermute', 'ds_permute', 'ds_swizzle')) or '_rtn' in mn:
                self.w = R[0]; self.r = U(R[1:])
            else:
                self.r = U(R)
        elif mn.startswith(('buffer_', 'global_')):
            self.kind = 'vmem'
            if mn.startswith(('buffer_wbl2', 'buffer_inv')):
                pass
            elif 'load' in mn:
                if re.search(r'\blds\b', mods) or '_lds_' in mn:
                    self.r = U(R) | {('s', 'm0')}
                else:
                    self.w = R[0]; self.r = U(R[1:])
            elif 'atomic' in mn:
                self.r = U(R)
                if 'sc0' in mods: self.w = R[0]
            else:
                self.r = U(R)
                if 'x4' in mn or 'x3' in mn:
                    self.sdata = R[0] if mn.startswith('buffer_') else R[1]
        elif mn.startswith('s_'):
            self.kind = 'salu'
            if mn == 's_nop': self.states = int(parts[0], 0) + 1
            elif mn.startswith('s_cbranch'): self.target = parts[0]
            elif mn == 's_branch': self.target = parts[0]; self.uncond = True
            elif mn == 's_endpgm': self.uncond = True
            elif mn.startswith(('s_cmp', 's_bitcmp', 's_waitcnt', 's_barrier', 's_sleep', 's_setprio', 's_setpc')):
                self.r = U(R)
                if mn.startswith('s_setpc'): self.uncond = True
            else:
                self.w = R[0] if R else set(); self.r = U(R[1:])
                if 'saveexec' in mn: self.w |= {('s', 'exec')}
        else:
            raise ValueError('unknown instr: ' + text)

def vg(x): return {r for r in x if r[0] in 'va'}
def sg(x): return {r for r in x if r[0] == 's'}

def need(p, c):
    n = 0
    if p.kind == 'valu':
        wv, ws = vg(p.w), sg(p.w)
        if c.kind == 'mfma' and wv & c.r: n = max(n, 2)
        if c.kind == 'valu':
            if ('permlane' in c.mn or '_dpp' in c.mn) and wv & c.r: n = max(n, 2)
            if c.mn.startswith(('v_readlane', 'v_readfirstlane')) and wv & c.r: n = max(n, 1)
            if p.mn.startswith(TRANS) and wv & c.r: n = max(n, 1)
            if ws & c.r: n = max(n, 4 if c.mn.startswith(('v_readlane', 'v_writelane', 'v_div_fmas')) else 2)
            if ('s', 'exec') in ws and ('_dpp' in c.mn): n = max(n, 5)
            if ('s', 'exec') in ws and ('permlane' in c.mn or 'lane' in c.mn): n = max(n, 4)
            if ('_sdwa' in p.mn or 'op_sel' in p.mods) and wv & (c.r | c.w): n = max(n, 1)
        if p.mn.startswith('v_dot') and c.kind in ('valu', 'mfma', 'ds', 'vmem') and wv & (c.r | c.w): n = max(n, 3)
        if c.kind == 'vmem' and ws & c.r: n = max(n, 5)
        if c.kind == 'mfma' and ('s', 'exec') in ws: n = max(n, 4)
    elif p.kind == 'mfma':
        big = {2: 5, 4: 8, 8: 12}[p.passes]
        if c.kind == 'mfma':
            if p.w & (c.a | c.b): n = max(n, big)
            if p.w & c.c:
                if p.w == c.c and p.passes == c.passes: n = max(n, 2 if p.passes == 2 else 0)
                else: n = max(n, {2: 4, 4: 6, 8: 10}[p.passes])
        elif c.kind in ('valu', 'ds', 'vmem'):
            if p.w & (c.r | c.w): n = max(n, big)
            if c.kind == 'valu' and p.c & c.w: n = max(n, {2: 1, 4: 3, 8: 7}[p.passes])
    elif p.kind == 'salu':
        if ('s', 'm0') in p.w and c.kind == 'vmem' and ('s', 'm0') in c.r: n = max(n, 1)
    elif p.kind == 'vmem':
        if p.sdata & c.w: n = max(n, 2 if c.kind == 'valu' else 1)
    return n

class Asm:
    def __init__(self):
        self.ins = []; self.uid = 0; self.vfill = None
    def __call__(self, text):
        for line in text.split('\n'):
            line = line.strip()
            if line and not line.startswith(';'): self.ins.append(Ins(line))
    def fill(self, n):
        if self.vfill:
            for _ in range(n): self.ins.append(Ins(self.vfill))
    def lab(self, name): self.ins.append(Ins(name + ':'))
    def new(self, p='L'):
        self.uid += 1; return f'{p}_{self.uid}'
    def pad(self, verbose=False):
        out = []
        for c in self.ins:
            if c.states:
                d = 0; req = 0; who = None
                for p in reversed(out):
                    if p.uncond: break
                    if p.states:
                        n = need(p, c) - d
                        if n > req: req = n; who = p
                        d += p.states
                    if d >= 12: break
                if req > 0:
                    if verbose: print(f'pad {req}: [{who.text}] -> [{c.text}]', file=sys.stderr)
                    if req >= 3 and self.vfill:
                        for _ in range(req): out.append(Ins(self.vfill))
                    else:
                        x = Ins(f's_nop {req - 1}'); x.auto = True; out.append(x)
            out.append(c)
        self.ins = out
        labs = {x.label: i for i, x in enumerate(out) if x.label}
        bad = 0
        for i, p in enumerate(out):
            if p.kind not in ('valu', 'mfma', 'salu', 'vmem'): continue
            if p.kind == 'salu' and ('s', 'm0') not in p.w: continue
            if p.kind == 'vmem' and not p.sdata: continue
            st = [(i + 1, 0)]; seen = set()
            while st:
                j, d = st.pop()
                while j < len(out) and d < 12:
                    if (j, d) in seen: break
                    seen.add((j, d))
                    c = out[j]
                    if c.states:
                        if need(p, c) > d:
                            print(f'HAZARD need {need(p, c)} have {d}: [{p.text}] -> [{c.text}]', file=sys.stderr); bad += 1
                        d += c.states
                        if c.target: st.append((labs[c.target], d))
                        if c.uncond: break
                    j += 1
        if bad: raise SystemExit('hazards found')
    def text(self):
        return '\n'.join((x.text if x.kind in ('label', 'dir') else '  ' + x.text) for x in self.ins) + '\n'

def vr(a, n=1): return f'v{a}' if n == 1 else f'v[{a}:{a + n - 1}]'
def ar(a, n=1): return f'a{a}' if n == 1 else f'a[{a}:{a + n - 1}]'
def sr(a, n=1): return f's{a}' if n == 1 else f's[{a}:{a + n - 1}]'
```

```python
from asmlib import *

MEMB, XCH, KXB, RED = 131072, 147456, 152064, 147456
vL16, vKX, vIDX, vMW, vMR, vWB, vXW, vXR, vOS, vL8 = 1, 2, 3, 4, 4, 8, 12, 13, 14, 15
ACC, MO, XR, WR, VXR, VMRAW, VM0, VM1, T0, T1 = 16, 32, 48, 80, 112, 120, 122, 124, 126, 127
vOOB = XR + 31
sLO, sKLO, sKHI, sC, sH = 60, 62, 63, 64, 65
sMLb, sMRb, sOb, sVMb, sA, sB, sRDY, sSRC, sMLw, sMRw, sFA = 66, 67, 68, 69, 70, 71, 72, 73, 74, 75, 76
sA2, sB2 = 53, 77

class Cnt:
    def __init__(self, A, name): self.A, self.name, self.q = A, name, []
    def op(self, text, tag): self.A(text); self.q.append(tag)
    def wait(self, tag):
        idx = max(i for i, t in enumerate(self.q) if t == tag)
        n = len(self.q) - 1 - idx
        assert n <= (15 if self.name == 'lgkmcnt' else 63)
        self.A(f's_waitcnt {self.name}({n})'); self.q = self.q[idx + 1:]
    def clear(self): self.q = []

def common_setup(G):
    A = G['A']; sW, sG, sI = G['sW'], G['sG'], G['sI']; sT0 = G['sT0']
    A(f'''v_lshlrev_b32 v{vL16}, 4, v0
    s_mov_b32 s{sLO}, -1
    s_mov_b32 s{sLO + 1}, 0
    s_mov_b32 s{sKLO}, 0x00003f80
    s_mov_b32 s{sKHI}, 0x3f800000
    s_mov_b32 s{sC}, 0x3e0293ee
    s_and_b32 s{sH}, s{sI}, 15
    v_and_b32 v{T0}, 1, v0
    v_cmp_ne_u32 vcc, 0, v{T0}
    v_mov_b32 v{vIDX}, 0x4444
    v_mov_b32 v{T1}, 0xeeee
    v_cndmask_b32 v{vIDX}, v{vIDX}, v{T1}, vcc
    v_and_b32 v{T0}, 8, v0
    v_cmp_ne_u32 vcc, 0, v{T0}''')
    A(f'''v_lshrrev_b32 v{T0}, 5, v0
    v_lshlrev_b32 v{T0}, 8, v{T0}
    v_and_b32 v{T1}, 7, v0
    v_lshl_add_u32 v{T0}, v{T1}, 5, v{T0}
    v_and_b32 v{T1}, 16, v0
    v_add_u32 v{T0}, v{T0}, v{T1}
    s_lshl_b32 s{sT0}, s{sW}, 9
    v_add_u32 v{T0}, s{sT0}, v{T0}
    v_mov_b32 v{T1}, 0x80000000
    v_cndmask_b32 v{vOS}, v{T0}, v{T1}, vcc
    v_lshl_add_u32 v{vL8}, v0, 3, s{sT0}''')
    for q in range(4):
        A(f's_xor_b32 s{sT0}, s{sW}, {q}\ns_lshl_b32 s{sT0}, s{sT0}, 12\ns_add_u32 s{sT0}, s{sT0}, {MEMB}\nv_add_u32 v{vMR + q}, s{sT0}, v{vL16}')
    A(f'''v_bfe_u32 v{T0}, v0, 2, 1
    v_lshlrev_b32 v{T0}, 4, v{T0}
    v_lshrrev_b32 v{T1}, 5, v0
    v_lshl_add_u32 v{T0}, v{T1}, 2, v{T0}
    v_bfe_u32 v{T1}, v0, 3, 1
    v_lshl_add_u32 v{T0}, v{T1}, 1, v{T0}
    v_bfe_u32 v{vWB}, v0, 4, 1
    v_add_u32 v{T0}, v{T0}, v{vWB}
    v_bfe_u32 v{vWB}, v0, 2, 1
    v_lshl_add_u32 v{T1}, v{vWB}, 1, v{T1}
    v_xor_b32 v{T1}, s{sW}, v{T1}
    v_lshlrev_b32 v{T1}, 5, v{T1}
    v_lshl_add_u32 v{T0}, v{T0}, 7, v{T1}
    v_and_b32 v{T1}, 3, v0
    v_lshl_add_u32 v{T0}, v{T1}, 3, v{T0}''')
    for q in range(4):
        A(f's_xor_b32 s{sT0}, s{sW}, {q}\ns_lshl_b32 s{sT0}, s{sT0}, 15\nv_add_u32 v{vWB + q}, s{sT0}, v{T0}')
    A(f'''v_mov_b32 v{vOOB}, 0x80000000
    s_lshl_b32 s{sMLb}, s{sG}, 16
    s_lshl_b32 s{sT0}, s{sW}, 12
    s_add_u32 s{sMLb}, s{sMLb}, s{sT0}
    s_add_u32 s{sMLb}, s{sMLb}, {G['ML']:#x}
    s_lshl_b32 s{sVMb}, s{sG}, 17
    s_lshl_b32 s{sT0}, s{sH}, 11
    s_add_u32 s{sVMb}, s{sVMb}, s{sT0}
    s_add_u32 s{sVMb}, s{sVMb}, {G['VMR']:#x}
    s_lshl_b32 s{sT0}, s{sG}, 4
    s_add_u32 s{sH}, s{sH}, s{sT0}''')

def report_xcc(G):
    A = G['A']; skip = A.new('Lx'); sT0, sT1 = G['sT0'], G['sT1']
    A(f'''s_cmp_lg_u32 s{G['sW']}, 0
    s_cbranch_scc1 {skip}
    s_getreg_b32 s{sT0}, hwreg(HW_REG_XCC_ID, 0, 4)
    s_lshl_b32 s{sT0}, 1, s{sT0}
    v_mov_b32 v{T0}, s{sT0}
    s_lshl_b32 s{sT1}, s{G['sG']}, 2
    s_mov_b64 exec, 1
    buffer_atomic_or v{T0}, off, {G['SRD'](G['S_DBG'])}, s{sT1} offset:4 sc1
    s_mov_b64 exec, -1''')
    A.lab(skip)

def choose_mode(G, vt, fast, slow):
    A = G['A']; sT0, sT1 = G['sT0'], G['sT1']
    A(f'''v_readfirstlane_b32 s{sT0}, v{vt + 1}
    v_readfirstlane_b32 s{sT1}, v{vt + 2}
    s_bcnt1_i32_b32 s{sT0}, s{sT0}
    s_bcnt1_i32_b32 s{sT1}, s{sT1}
    s_max_u32 s{sFA}, s{sT0}, s{sT1}''')
    if G['CFG']['force_slow']: A(f's_mov_b32 s{sFA}, 2')

def tile_readout(A, dst, hf):
    for q in range(4):
        for cc in range(2):
            c = 2 * hf + cc
            for rs in range(2):
                for u in range(2):
                    A(f'ds_read_b64_tr_b16 {dst(8 * (4 * q + c) + 4 * rs + 2 * u)}, v{vWB + q} offset:{c * 8192 + (8 * rs + 32 * u) * 128}')

def wblock_reads(i):
    q, c = i >> 2, i & 3
    return [f'ds_read_b64_tr_b16 {vr(WR + 8 * (i & 3) + 4 * rs + 2 * u, 2)}, v{vWB + q} offset:{c * 8192 + (8 * rs + 32 * u) * 128}'
            for rs in range(2) for u in range(2)]

def any_sentinel(A, base, n, t):
    A(f'v_max3_u32 v{t}, v{base}, v{base + 1}, v{base + 2}') if n >= 3 else A(f'v_max_u32 v{t}, v{base}, v{base + 1}')
    i = 3
    while i < n:
        if i + 1 < n: A(f'v_max3_u32 v{t}, v{t}, v{base + i}, v{base + i + 1}'); i += 2
        else: A(f'v_max_u32 v{t}, v{t}, v{base + i}'); i += 1
    A(f'v_cmp_eq_u32 vcc, -1, v{t}')

def slot_off(G, dst, base, shift, add=0):
    A = G['A']; s = G['sSTEP']
    if add: A(f's_add_u32 s{dst}, s{s}, {add}\ns_and_b32 s{dst}, s{dst}, 3')
    else: A(f's_and_b32 s{dst}, s{s}, 3')
    A(f's_lshl_b32 s{dst}, s{dst}, {shift}\ns_add_u32 s{dst}, s{dst}, s{base}')

def light_wait(G, N, ld, reg, blk, between):
    A = G['A']; np_ = G['CFG']['np']
    slots = [0, N // 2][:np_]
    wtop = A.new('Lw'); trg = [A.new('Lt') for _ in slots]
    ld(slots[0]); between()
    if np_ > 1: ld(slots[1])
    A.lab(wtop)
    for s, t in zip(slots, trg):
        A(f's_waitcnt vmcnt({np_ - 1})\nv_cmp_eq_u32 vcc, -1, v{reg(s)}\ns_cbranch_vccz {t}')
        ld(s)
    G['spin_check'](); A(f's_branch {wtop}')
    for s, t in zip(slots, trg):
        A.lab(t)
        for k in range(1, N): ld((s + k) % N)
        A(f's_branch {blk[s]}')

def get_mem(G, nacc):
    A = G['A']; WS = G['SRD'](G['S_WS']); sMASK = sSRC
    slot_off(G, sA, sMLb, 14)
    ld = lambda c: A(f'buffer_load_dwordx4 {vr(MO + 4 * c, 4)}, v{vL16}, {WS}, s{sA} offen offset:{1024 * c} sc1')
    dummy = lambda: A(f'buffer_load_dword v{T1}, v{vOOB}, {WS}, 0 offen')
    start, wtop, done, bad = A.new('Lm'), A.new('Lm'), A.new('Lm'), A.new('Lm')
    blk = [A.new('Lb') for _ in range(4)]; slo = [A.new('Ls') for _ in range(5)]; xit = [A.new('Lx') for _ in range(4)]
    A.lab(start)
    A(f'v_mov_b32 v{vOOB}, 0x80000000')
    A(f'v_mov_b32 v{T0}, 0\ns_mov_b32 s{sMASK}, 15')
    light_wait(G, 4, ld, lambda c: MO + 4 * c + 3, blk, lambda: A('s_nop 15\ns_nop 7'))
    A.lab(bad)
    A('s_waitcnt vmcnt(0) lgkmcnt(0)\ns_nop 7')
    for i in range(nacc): A(f'v_mov_b32 v{ACC + i}, 0')
    G['spin_check'](); A(f's_branch {start}')
    for c in range(4):
        A.lab(xit[c])
        A(f's_cmp_eq_u32 s{sMASK}, 0\ns_cbranch_scc1 {done}')
        A.lab(slo[c])
        dn = A.new('Ld')
        A(f's_bitcmp1_b32 s{sMASK}, {c}\ns_cbranch_scc0 {dn}\ns_waitcnt vmcnt(3)\nv_cmp_eq_u32 vcc, -1, v{MO + 4 * c + 3}\ns_cbranch_vccz {blk[c]}')
        ld(c); A(f's_branch {slo[c + 1]}')
        A.lab(dn); dummy(); A(f's_branch {slo[c + 1]}')
    A.lab(slo[4])
    G['spin_check'](); A(f's_branch {slo[0]}')
    for c in range(4):
        n = (c + 1) & 3; m = MO + 4 * c
        A.lab(blk[c])
        dummy()
        A(f'''s_bitset0_b32 s{sMASK}, {c}
        s_waitcnt vmcnt(3)
        v_cmp_eq_u32 vcc, -1, v{MO + 4 * n + 3}
        ds_write_b128 v{vMW}, {vr(m, 4)} offset:{1024 * c}
        v_max3_u32 v{T0}, v{T0}, v{m}, v{m + 1}
        v_max_u32 v{T0}, v{T0}, v{m + 2}
        s_bitcmp1_b32 s{sMASK}, {n}
        s_cselect_b64 vcc, vcc, -1
        s_cbranch_vccnz {xit[n]}''')
    A(f's_branch {blk[0]}')
    A.lab(done)
    A(f'v_cmp_eq_u32 vcc, -1, v{T0}')
    return bad

def load_mem0(G):
    A = G['A']; sT0, sT1, sT2 = G['sT0'], G['sT1'], G['sT2']
    G['set_srd'](G['S_X'], G['P_MEM0'], 16384)
    A(f'''v_bfe_u32 v{T0}, v0, 1, 3
    v_lshlrev_b32 v{T0}, 11, v{T0}
    v_lshrrev_b32 v{T1}, 4, v0
    v_lshl_add_u32 v{T0}, v{T1}, 3, v{T0}
    v_and_b32 v{T1}, 1, v0
    v_lshl_add_u32 v{T0}, v{T1}, 2, v{T0}
    s_lshl_b32 s{sT0}, s{G['sW']}, 9''')
    for c in range(4):
        for t in range(4): A(f'buffer_load_dword v{XR + 4 * c + t}, v{T0}, {G["SRD"](G["S_X"])}, s{sT0} offen offset:{128 * c + 32 * t}')
    A(f's_mov_b32 s{sT1}, 0x05040100\ns_mov_b32 s{sT2}, 0x07060302\ns_waitcnt vmcnt(0)')
    for c in range(4):
        x = XR + 4 * c
        A(f'''v_perm_b32 v{MO + 4 * c}, v{x + 1}, v{x}, s{sT1}
        v_perm_b32 v{MO + 4 * c + 1}, v{x + 3}, v{x + 2}, s{sT1}
        v_perm_b32 v{MO + 4 * c + 2}, v{x + 1}, v{x}, s{sT2}
        v_perm_b32 v{MO + 4 * c + 3}, v{x + 3}, v{x + 2}, s{sT2}
        ds_write_b128 v{vMW}, {vr(MO + 4 * c, 4)} offset:{1024 * c}''')

def proj_loop(G, tiles, extra_reads, after_b1, bad):
    A = G['A']; ds = Cnt(A, 'lgkmcnt')
    G['stamp']('mem valid')
    extra = list(extra_reads)
    for i in range(16):
        a = MO + 4 * i if i < 4 else XR + 4 * (i & 3)
        if i >= 4: ds.wait(i)
        rd = []
        if 1 <= i <= 12:
            j = i + 3
            rd = [(f'ds_read_b128 {vr(XR + 4 * (j & 3), 4)}, v{vMR + (j >> 2)} offset:{1024 * (j & 3)}', j)] + [(x, j) for x in wblock_reads(j)]
        elif i >= 13:
            k = 3 if i < 15 else len(extra)
            rd = [(x, 'x') for x in extra[:k]]; extra = extra[k:]
        nt = len(tiles)
        for t, (acc, b) in enumerate(tiles):
            A(f'v_smfmac_f32_16x16x64_bf16 {vr(acc, 4)}, {vr(a, 4)}, {b(i)}, v{vIDX}')
            k = -(-len(rd) // (nt - t))
            for x, tag in rd[:k]: ds.op(x, tag)
            rd = rd[k:]
        if i == 0:
            A(f's_cbranch_vccnz {bad}\ns_waitcnt lgkmcnt(0)\ns_barrier')
            G['stamp']('B1 passed')
            after_b1()

def fold_pk(A, t, dst):
    A(f'v_add_f32 v{t}, v{t}, v{t + 1}\nv_add_f32 v{t + 2}, v{t + 2}, v{t + 3}\nv_cvt_pk_bf16_f32 v{dst}, v{t}, v{t + 2}')

def xlane(A, op, x, t):
    A(f'v_mov_b32 v{t}, v{x}\nv_permlane32_swap_b32 v{x}, v{t}\n{op} v{x}, v{x}, v{t}')
    A(f'v_mov_b32 v{t}, v{x}\nv_permlane16_swap_b32 v{x}, v{t}\n{op} v{x}, v{x}, v{t}')

def rt_stamp(G, which):
    if not G['CFG']['stamp']: return
    A = G['A']; skip = A.new('Lrt')
    A(f'''s_cmp_lg_u32 s{G['sW']}, 0
    s_cbranch_scc1 {skip}
    s_memrealtime s[56:57]
    s_waitcnt lgkmcnt(0)
    s_sub_u32 s56, s56, s36
    v_mov_b32 v{T0}, s56
    s_lshl_b32 s57, s2, 5
    s_add_u32 s57, s57, {G['STAMPS']:#x}
    buffer_store_dword v{T0}, off, {G['SRD'](G['S_WS'])}, s57 offset:{4 * which}''')
    A.lab(skip)

def gen_qk(G):
    A = G['A']; SRD = G['SRD']; WS = SRD(G['S_WS']); sW, sG = G['sW'], G['sG']; sSTEP = G['sSTEP']
    sT0, sT1 = G['sT0'], G['sT1']
    A.lab('L_qk')
    common_setup(G)
    A(f'''v_add_u32 v{vKX}, {KXB}, v{vL16}
    v_and_b32 v{T0}, 15, v0
    s_lshl_b32 s{sT0}, s{sW}, 4
    v_add_u32 v{T0}, s{sT0}, v{T0}
    v_lshlrev_b32 v{T0}, 3, v{T0}
    v_bfe_u32 v{T1}, v0, 4, 1
    v_lshl_add_u32 v{T0}, v{T1}, 2, v{T0}
    v_lshrrev_b32 v{T1}, 5, v0
    v_mul_u32_u24 v{T1}, 1152, v{T1}
    v_add_u32 v{T0}, v{T0}, v{T1}
    v_add_u32 v{vXW}, {XCH}, v{T0}
    v_lshrrev_b32 v{T0}, 2, v0
    v_lshlrev_b32 v{T0}, 3, v{T0}
    v_and_b32 v{T1}, 1, v0
    v_mul_u32_u24 v{T1}, 1152, v{T1}
    v_add_u32 v{T0}, v{T0}, v{T1}
    v_add_u32 v{vXR}, {XCH}, v{T0}
    s_lshl_b32 s{sOb}, s{sG}, 17
    s_and_b32 s{sT0}, s{sH}, 15
    s_lshl_b32 s{sT0}, s{sT0}, 11
    s_add_u32 s{sOb}, s{sOb}, s{sT0}
    s_add_u32 s{sOb}, s{sOb}, {G['OR_']:#x}''')
    G['init_flag'](T0)
    report_xcc(G)
    for j in range(4): A(f'v_mov_b32 v{XR + j}, -1')
    for sl in range(4):
        A(f's_add_u32 s{sT0}, s{sOb}, {sl * 32768}\nbuffer_store_dwordx4 {vr(XR, 4)}, v{vOS}, {WS}, s{sT0} offen sc1')
    vE, vO = ACC, ACC + 1
    G['dma_voffsets'](vE, vO, 8192, T0)
    loads = []
    for mat, (ptr, half) in enumerate(((G['P_WQ'], 0), (G['P_WQ'], 1), (G['P_WK'], 0), (G['P_WK'], 1))):
        for hf in range(2):
            def issue(ptr=ptr, half=half, hf=hf):
                G['set_srd'](G['S_W'], ptr, 1024 * 8192)
                A(f's_lshl_b32 s{sSRC}, s{sW}, 21\ns_lshl_b32 s{sT0}, s{sH}, 8\ns_add_u32 s{sSRC}, s{sSRC}, s{sT0}\ns_add_u32 s{sSRC}, s{sSRC}, {hf * 128 * 8192 + half * 128}')
                G['dma_half'](vE, vO, sSRC, hf, 8192)
            dst = [lambda r: ar(r, 2), lambda r: ar(128 + r, 2), lambda r: vr(128 + r, 2), None][mat]
            loads.append((issue, (lambda dst=dst, hf=hf: tile_readout(A, dst, hf)) if dst else None))
    G['staged_load'](loads, lambda: G['arrive'](T0))
    rt_stamp(G, 0)
    G['wait_all_arrived'](XR)
    choose_mode(G, XR, None, None)
    lp, ok = A.new('Lq0'), A.new('Lq0')
    A(f'v_and_b32 v{T1}, 1, v0\nv_lshlrev_b32 v{T1}, 7, v{T1}\ns_lshl_b32 s{sT1}, s{sH}, 10\ns_add_u32 s{sT1}, s{sT1}, 256')
    A.lab(lp)
    A(f'buffer_load_dword v{T0}, v{T1}, {WS}, s{sT1} offen sc1\ns_waitcnt vmcnt(0)\nv_cmp_eq_u32 vcc, 0, v{T0}\ns_cbranch_vccz {ok}\ns_sleep 2')
    G['spin_check'](); A(f's_branch {lp}')
    A.lab(ok)

    def fetch_x(step_add):
        A(f'''s_add_u32 s{sA}, s{sSTEP}, {step_add}
        s_lshl_b32 s{sA}, s{sA}, 5
        s_add_u32 s{sA}, s{sA}, s{sH}
        s_lshl_b32 s{sA}, s{sA}, 13
        s_lshl_b32 s{sT0}, s{sW}, 11
        s_add_u32 s{sA}, s{sA}, s{sT0}
        s_add_u32 s{sT0}, s{sT0}, {KXB}
        s_mov_b32 m0, s{sT0}
        s_add_u32 s{sB}, s{sA}, {G['VX']:#x}
        s_add_u32 s{sA}, s{sA}, {G['KX']:#x}
        buffer_load_dwordx4 v{vL16}, {WS}, s{sA} offen sc1 lds
        buffer_load_dwordx4 v{vL16}, {WS}, s{sA} offen offset:1024 sc1 lds
        buffer_load_dwordx4 {vr(VXR, 4)}, v{vL16}, {WS}, s{sB} offen sc1
        buffer_load_dwordx4 {vr(VXR + 4, 4)}, v{vL16}, {WS}, s{sB} offen offset:1024 sc1''')
    def prep_next():
        for i in range(16): A(f'v_mov_b32 v{ACC + i}, 0')
        for i in range(4):
            for x in wblock_reads(i): A(x)
            if i == 2: A('s_waitcnt lgkmcnt(4)')
    A(f's_mov_b32 s{sSTEP}, 0')
    fetch_x(0); load_mem0(G); prep_next()
    A('s_waitcnt vmcnt(0) lgkmcnt(0)')
    rt_stamp(G, 1)
    A(f's_mov_b64 vcc, 0\ns_cmp_gt_u32 s{sFA}, 1\ns_cbranch_scc1 L_qk_e1\ns_branch L_qk_e0')

    for mode in range(2):
        SC = ' sc1' if mode else ''
        A.lab(f'L_qk_top{mode}')
        A('s_waitcnt lgkmcnt(0)')
        bad = get_mem(G, 16)
        A.lab(f'L_qk_e{mode}')
        KXR = lambda t, ks: vr((MO if t == 0 else XR + 16) + 4 * ks, 4)
        def after_b1():
            skip = A.new('Lf')
            A(f's_cmp_lg_u32 s{sW}, 3\ns_cbranch_scc1 {skip}')
            G['flag_store'](f's{sSTEP}', T0)
            A.lab(skip)
        proj_loop(G, [(ACC, lambda i: ar(8 * i, 8)), (ACC + 4, lambda i: ar(128 + 8 * i, 8)),
                      (ACC + 8, lambda i: vr(128 + 8 * i, 8)), (ACC + 12, lambda i: vr(WR + 8 * (i & 3), 8))],
                  [f'ds_read_b128 {KXR(t, ks)}, v{vKX} offset:{(4 * t + ks) * 1024}' for ks in range(4) for t in range(2)], after_b1, bad)
        G['stamp']('proj issued')
        slot_off(G, sA, sVMb, 15)
        for t in range(4):
            fold_pk(A, ACC + 4 * t, ACC + 4 * t)
            A(f'ds_write_b32 v{vXW}, v{ACC + 4 * t} offset:{(t >> 1) * 2304 + (t & 1) * 512}')
        A('s_waitcnt lgkmcnt(0)\ns_barrier')
        G['stamp']('B2 passed')
        last = A.new('Lql')
        A(f's_cmp_eq_u32 s{sSTEP}, 63\ns_cbranch_scc1 {last}')
        ds = Cnt(A, 'lgkmcnt')
        Q, K = WR, WR + 16
        for m, base in ((0, Q), (1, K)):
            for ks in range(4):
                if m == 1 and ks == 3: break
                for p in range(2): ds.op(f'ds_read_b64_tr_b16 {vr(base + 4 * ks + 2 * p, 2)}, v{vXR} offset:{(32 * ks + 16 * p) * 8 + m * 2304}', (m, ks))
        S = XR
        for ks in range(4):
            ds.wait((0, ks))
            for t in range(2):
                A(f'v_mfma_f32_16x16x32_bf16 {vr(S + 4 * t, 4)}, {KXR(t, ks)}, {vr(Q + 4 * ks, 4)}, {vr(S + 4 * t, 4) if ks else 0}')
            if ks == 0:
                for p in range(2): ds.op(f'ds_read_b64_tr_b16 {vr(K + 12 + 2 * p, 2)}, v{vXR} offset:{(96 + 16 * p) * 8 + 2304}', (1, 3))
        ds.wait((1, 3))
        for ks in range(4):
            A(f'v_mfma_f32_16x16x32_bf16 {vr(S + 8, 4)}, {vr(K + 4 * ks, 4)}, {vr(Q + 4 * ks, 4)}, {vr(S + 8, 4) if ks else 0}')
        A(f'buffer_load_dwordx2 {vr(VMRAW, 2)}, v{vL8}, {WS}, s{sA} offen sc1')
        G['stamp']('S issued')
        m_, t_, l_, l2 = XR + 12, XR + 13, XR + 14, XR + 15
        A(f'v_max3_f32 v{m_}, v{S}, v{S + 1}, v{S + 2}\nv_max3_f32 v{m_}, v{m_}, v{S + 3}, v{S + 4}\nv_max3_f32 v{m_}, v{m_}, v{S + 5}, v{S + 6}')
        A(f'v_max3_f32 v{m_}, v{m_}, v{S + 7}, v{S + 8}\nv_max3_f32 v{m_}, v{m_}, v{S + 9}, v{S + 10}\nv_max_f32 v{m_}, v{m_}, v{S + 11}')
        xlane(A, 'v_max_f32', m_, t_)
        A(f'v_mul_f32 v{m_}, s{sC}, v{m_}')
        for i in range(12): A(f'v_fma_f32 v{S + i}, v{S + i}, s{sC}, -v{m_}')
        for i in range(12): A(f'v_exp_f32 v{S + i}, v{S + i}')
        PX, PM, O0 = ACC + 8, ACC + 12, ACC
        for i in range(6): A(f'v_cvt_pk_bf16_f32 v{PX + i}, v{S + 2 * i}, v{S + 2 * i + 1}')
        G['stamp']('P ready / O valid')
        for t in range(2): A(f'v_mfma_f32_16x16x32_bf16 {vr(O0 + 4 * t, 4)}, {vr(VXR + 4 * t, 4)}, {vr(PX, 4)}, 0')
        w1, w2 = A.new('Lv'), A.new('Lv')
        A.lab(w1)
        A('s_waitcnt vmcnt(0)')
        any_sentinel(A, VMRAW, 2, T0)
        A(f's_cbranch_vccz {w2}')
        G['spin_check']()
        A(f'buffer_load_dwordx2 {vr(VMRAW, 2)}, v{vL8}, {WS}, s{sA} offen sc1\ns_branch {w1}')
        A.lab(w2)
        for j in range(2):
            A(f'v_cndmask_b32 v{VM0 + j}, 0, v{VMRAW + j}, s[{sLO}:{sLO + 1}]\nv_cndmask_b32 v{VM1 + j}, v{VMRAW + j}, 0, s[{sLO}:{sLO + 1}]')
        A(f'v_add_f32 v{l2}, v{S + 8}, v{S + 9}\nv_add_f32 v{l_}, v{S}, v{S + 1}')
        for t in range(2): A(f'v_mfma_f32_16x16x16_bf16 {vr(O0 + 4 * t, 4)}, {vr(VM0 + 2 * t, 2)}, {vr(PM, 2)}, {vr(O0 + 4 * t, 4)}')
        A(f'v_add_f32 v{l2}, v{l2}, v{S + 10}\nv_add_f32 v{l_}, v{l_}, v{S + 2}\nv_add_f32 v{l2}, v{l2}, v{S + 11}')
        for i in range(3, 8): A(f'v_add_f32 v{l_}, v{l_}, v{S + i}')
        A(f'v_fma_f32 v{l_}, v{l2}, 0.5, v{l_}')
        xlane(A, 'v_add_f32', l_, t_)
        G['stamp']('sum done')
        A(f'v_rcp_f32 v{l_}, v{l_}')
        slot_off(G, sB, sOb, 15)
        for i in range(8): A(f'v_mul_f32 v{O0 + i}, v{O0 + i}, v{l_}')
        for i in range(4): A(f'v_cvt_pk_bf16_f32 v{PX + i}, v{O0 + 2 * i}, v{O0 + 2 * i + 1}')
        A(f'buffer_store_dwordx4 {vr(PX, 4)}, v{vOS}, {WS}, s{sB} offen{SC}')
        G['stamp']('stored')
        def publish():
            A(f's_lshl_b32 s{sT0}, s{sW}, 8\nv_add_u32 v{T0}, s{sT0}, v{vXR}')
            for p in range(2): A(f'ds_read_b64_tr_b16 {vr(XR + 2 * p, 2)}, v{T0} offset:{16 * p * 8 + 2304}')
            A(f'''s_lshl_b32 s{sA}, s{sSTEP}, 5
            s_add_u32 s{sA}, s{sA}, s{sH}
            s_lshl_b32 s{sA}, s{sA}, 11
            s_add_u32 s{sB}, s{sA}, {G['VMP']:#x}
            s_add_u32 s{sA}, s{sA}, {G['KM']:#x}
            buffer_store_dwordx2 {vr(VMRAW, 2)}, v{vL8}, {WS}, s{sB} offen sc1
            s_waitcnt lgkmcnt(0)
            buffer_store_dwordx4 {vr(XR, 4)}, v{vOS}, {WS}, s{sA} offen sc1''')
        publish()
        fetch_x(1)
        for j in range(4): A(f'v_mov_b32 v{XR + 4 + j}, -1')
        slot_off(G, sB, sOb, 15, 2)
        A(f'buffer_store_dwordx4 {vr(XR + 4, 4)}, v{vOS}, {WS}, s{sB} offen{SC}')
        prep_next()
        G['stamp_flush'](T0)
        A(f's_add_u32 s{sSTEP}, s{sSTEP}, 1\ns_branch L_qk_top{mode}')
        A.lab(last)
        A(f'buffer_load_dwordx2 {vr(VMRAW, 2)}, v{vL8}, {WS}, s{sA} offen sc1')
        w1, w2 = A.new('Lv'), A.new('Lv')
        A.lab(w1)
        A('s_waitcnt vmcnt(0)')
        any_sentinel(A, VMRAW, 2, T0)
        A(f's_cbranch_vccz {w2}')
        G['spin_check']()
        A(f'buffer_load_dwordx2 {vr(VMRAW, 2)}, v{vL8}, {WS}, s{sA} offen sc1\ns_branch {w1}')
        A.lab(w2)
        publish()
        A('s_waitcnt vmcnt(0)\ns_barrier')
        rt_stamp(G, 2)
        A(f's_cmp_lg_u32 s{sW}, 3\ns_cbranch_scc1 L_end')
        G['flag_store'](64, T0)
        A('s_branch L_end')

def gen_vo(G):
    A = G['A']; SRD = G['SRD']; WS = SRD(G['S_WS']); sW, sG = G['sW'], G['sG']; sSTEP = G['sSTEP']
    sT0, sT1 = G['sT0'], G['sT1']
    par = G['CFG']['par']
    vVS, vMS, vFL, vWU, vPS, vPL = vOS, vL8, vKX, 112, 113, 124
    A.lab('L_vo')
    common_setup(G)
    A(f'''v_lshrrev_b32 v{T0}, 5, v0
    v_lshlrev_b32 v{T0}, 7, v{T0}
    v_and_b32 v{T1}, 15, v0
    v_lshl_add_u32 v{T0}, v{T1}, 3, v{T0}
    v_bfe_u32 v{T1}, v0, 4, 1
    v_lshl_add_u32 v{T0}, v{T1}, 2, v{T0}
    s_lshl_b32 s{sT0}, s{sW}, 8
    v_add_u32 v{vVS}, s{sT0}, v{T0}
    v_lshl_add_u32 v{vMS}, v0, 2, s{sT0}
    v_and_b32 v{T1}, 1, v0
    v_lshlrev_b32 v{T1}, 7, v{T1}
    s_lshl_b32 s{sT0}, s{sH}, 10
    s_add_u32 s{sT0}, s{sT0}, 256
    v_add_u32 v{vFL}, s{sT0}, v{T1}
    v_lshrrev_b32 v{T0}, 5, v0
    v_lshlrev_b32 v{T0}, 24, v{T0}
    v_and_b32 v{T1}, 31, v0
    v_lshl_add_u32 v{T0}, v{T1}, 6, v{T0}
    s_lshl_b32 s{sT0}, s{sW}, 11
    v_add_u32 v{vWU}, s{sT0}, v{T0}
    v_bfe_u32 v{T0}, v0, 2, 2
    v_lshlrev_b32 v{T0}, 8, v{T0}
    v_lshrrev_b32 v{T1}, 4, v0
    v_lshl_add_u32 v{T0}, v{T1}, 6, v{T0}
    v_and_b32 v{vPS}, 3, v0
    v_lshl_add_u32 v{T0}, v{vPS}, 4, v{T0}
    v_add_u32 v{vPS}, s{sT0}, v{T0}
    v_bfe_u32 v{T0}, v0, 3, 1
    v_lshlrev_b32 v{T0}, 10, v{T0}
    v_lshl_add_u32 v{T0}, v{T1}, 6, v{T0}
    v_and_b32 v{T1}, 7, v0
    v_lshl_add_u32 v{T0}, v{T1}, 3, v{T0}
    s_lshl_b32 s{sT0}, s{sW}, 8
    v_add_u32 v{vPL}, s{sT0}, v{T0}''')
    assert G['VX'] - G['KX'] == 1 << 24
    A(f'''v_bfe_u32 v{T0}, v0, 2, 2
    v_mul_u32_u24 v{T0}, 576, v{T0}
    v_lshrrev_b32 v{T1}, 4, v0
    v_lshl_add_u32 v{T0}, v{T1}, 7, v{T0}
    v_and_b32 v{T1}, 3, v0
    v_lshl_add_u32 v{T0}, v{T1}, 4, v{T0}
    s_mul_i32 s{sT0}, s{sW}, 2304
    s_add_u32 s{sT0}, s{sT0}, {RED}
    v_add_u32 v{vXW}, s{sT0}, v{T0}
    s_mul_i32 s{sT0}, s{sW}, 576
    s_add_u32 s{sT0}, s{sT0}, {RED}
    v_lshl_add_u32 v{vXR}, v0, 3, s{sT0}''')
    A(f'''s_lshl_b32 s{sOb}, s{sG}, 17
    s_lshl_b32 s{sT0}, s{sW}, 13
    s_add_u32 s{sOb}, s{sOb}, s{sT0}
    s_add_u32 s{sOb}, s{sOb}, {G['OR_']:#x}
    s_and_b32 s{sT1}, s{sH}, 15
    s_lshl_b32 s{sMLw}, s{sG}, 16
    s_lshl_b32 s{sT0}, s{sT1}, 10
    s_add_u32 s{sMLw}, s{sMLw}, s{sT0}
    s_add_u32 s{sMLw}, s{sMLw}, {G['ML']:#x}
    s_lshl_b32 s{sMRw}, s{sG}, 20
    s_lshl_b32 s{sT0}, s{sT1}, 14
    s_add_u32 s{sMRw}, s{sMRw}, s{sT0}
    s_add_u32 s{sMRw}, s{sMRw}, {G['MR'] + par * 8192:#x}
    s_xor_b32 s{sMRb}, s{sMRw}, 0x100000''')
    G['init_flag'](T0)
    report_xcc(G)
    for j in range(4): A(f'v_mov_b32 v{XR + j}, -1')
    for sl in range(4):
        A(f's_add_u32 s{sT0}, s{sVMb}, {sl * 32768}\nbuffer_store_dword v{XR}, v{vVS}, {WS}, s{sT0} offen sc1\nbuffer_store_dword v{XR}, v{vVS}, {WS}, s{sT0} offen offset:1024 sc1')
        A(f's_add_u32 s{sT0}, s{sMLw}, {sl * 16384}\nbuffer_store_dword v{XR}, v{vMS}, {WS}, s{sT0} offen sc1')
        A(f's_add_u32 s{sT0}, s{sMRw}, {sl << 18}\nbuffer_store_dwordx4 {vr(XR, 4)}, v{vPS}, {WS}, s{sT0} offen sc1\nbuffer_store_dwordx4 {vr(XR, 4)}, v{vPS}, {WS}, s{sT0} offen offset:1024 sc1')
    vE, vO, vE2, vO2, vB = ACC, ACC + 1, ACC + 2, ACC + 3, ACC + 4
    G['dma_voffsets'](vE, vO, 2048, T0)
    G['dma_voffsets'](vE2, vO2, 8192, T0)
    A(f'''v_and_b32 v{T0}, 16, v0
    v_lshrrev_b32 v{T1}, 5, v0
    v_lshl_add_u32 v{T0}, v{T1}, 3, v{T0}
    v_bfe_u32 v{T1}, v0, 3, 1
    v_lshl_add_u32 v{T0}, v{T1}, 2, v{T0}
    v_bfe_u32 v{T1}, v0, 2, 1
    v_add_u32 v{T0}, v{T0}, v{T1}
    v_bfe_u32 v{T1}, v0, 4, 1
    v_lshlrev_b32 v{T1}, 6, v{T1}
    v_lshl_add_u32 v{T0}, v{T0}, 7, v{T1}
    v_and_b32 v{T1}, 3, v0
    v_lshl_add_u32 v{T0}, v{T1}, 3, v{T0}
    s_lshl_b32 s{sT0}, s{sW}, 15
    v_add_u32 v{T0}, s{sT0}, v{T0}''')
    for ct in range(4): A(f'v_xor_b32 v{vB + ct}, {32 * ct}, v{T0}')
    loads = []
    for ld in range(4):
        def issue(ld=ld):
            G['set_srd'](G['S_W'], G['P_WO'], 4096 * 2048)
            A(f'''s_lshl_b32 s{sSRC}, s{sG}, 22
            s_lshl_b32 s{sT0}, s{sW}, 20
            s_add_u32 s{sSRC}, s{sSRC}, s{sT0}
            s_and_b32 s{sT0}, s{sH}, 15
            s_lshl_b32 s{sT0}, s{sT0}, 7
            s_add_u32 s{sSRC}, s{sSRC}, s{sT0}
            s_add_u32 s{sSRC}, s{sSRC}, {ld * 128 * 2048}''')
            G['dma_half'](vE, vO, sSRC, ld & 1, 2048)
        def rd(ld=ld):
            for cc in range(2):
                for ct in range(4):
                    for rs in range(2):
                        for u in range(2):
                            A(f'ds_read_b64_tr_b16 {ar(((2 * ld + cc) * 4 + ct) * 8 + 4 * rs + 2 * u, 2)}, v{vB + (ct ^ u)} offset:{(ld & 1) * 16384 + cc * 8192 + (32 * rs + 2 * u) * 128}')
        loads.append((issue, rd))
    for half in range(2):
        for hf in range(2):
            def issue(half=half, hf=hf):
                G['set_srd'](G['S_W'], G['P_WV'], 1024 * 8192)
                A(f's_lshl_b32 s{sSRC}, s{sW}, 21\ns_lshl_b32 s{sT0}, s{sH}, 8\ns_add_u32 s{sSRC}, s{sSRC}, s{sT0}\ns_add_u32 s{sSRC}, s{sSRC}, {hf * 128 * 8192 + half * 128}')
                G['dma_half'](vE2, vO2, sSRC, hf, 8192)
            loads.append((issue, (lambda hf=hf: tile_readout(A, lambda r: vr(128 + r, 2), hf)) if half == 0 else None))
    G['staged_load'](loads, lambda: G['arrive'](T0))
    rt_stamp(G, 0)
    G['wait_all_arrived'](XR)
    choose_mode(G, XR, None, None)
    def prep_ring():
        for i in range(4):
            for x in wblock_reads(i): A(x)
            if i == 2: A('s_waitcnt lgkmcnt(4)')
    A(f's_mov_b32 s{sSTEP}, 0\ns_mov_b32 s{sRDY}, 0')
    load_mem0(G); prep_ring()
    for i in range(8): A(f'v_mov_b32 v{ACC + i}, 0')
    A('s_waitcnt vmcnt(0) lgkmcnt(0)')
    A(f's_mov_b64 vcc, 0\ns_cmp_gt_u32 s{sFA}, 1\ns_cbranch_scc1 L_vo_e1\ns_branch L_vo_e0')
    FL, WUD = 114, 115
    for mode in range(2):
        SC = ' sc1' if mode else ''
        A.lab(f'L_vo_top{mode}')
        bad = get_mem(G, 8)
        A.lab(f'L_vo_e{mode}')
        def after_b1():
            A(f'''buffer_load_dword v{FL}, v{vFL}, {WS}, 0 offen sc1
            s_add_u32 s{sA}, s{sSTEP}, 2
            s_cmp_gt_u32 s{sRDY}, s{sA}
            s_cselect_b32 s{sT0}, 0, 0x80000000
            v_or_b32 v{WUD}, s{sT0}, v{vWU}
            s_lshl_b32 s{sA}, s{sA}, 5
            s_add_u32 s{sA}, s{sA}, s{sH}
            s_lshl_b32 s{sA}, s{sA}, 13
            s_add_u32 s{sA}, s{sA}, {G['KX']:#x}
            buffer_load_dword v{WUD}, v{WUD}, {WS}, s{sA} offen sc1''')
        proj_loop(G, [(ACC, lambda i: vr(128 + 8 * i, 8)), (ACC + 4, lambda i: vr(WR + 8 * (i & 3), 8))], [], after_b1, bad)
        G['stamp']('proj issued')
        r1, r2 = A.new('Lr'), A.new('Lr')
        A(f's_add_u32 s{sB}, s{sSTEP}, 2\ns_min_u32 s{sB}, s{sB}, 64\ns_waitcnt vmcnt(1)')
        A.lab(r1)
        A(f'''v_readlane_b32 s{sT0}, v{FL}, 0
        v_readlane_b32 s{sT1}, v{FL}, 1
        s_min_u32 s{sRDY}, s{sT0}, s{sT1}
        s_cmp_ge_u32 s{sRDY}, s{sB}
        s_cbranch_scc1 {r2}''')
        G['spin_check']()
        A(f'buffer_load_dword v{FL}, v{vFL}, {WS}, 0 offen sc1\ns_waitcnt vmcnt(0)\ns_branch {r1}')
        A.lab(r2)
        slot_off(G, sA, sVMb, 15)
        for t in range(2):
            fold_pk(A, ACC + 4 * t, ACC + 4 * t)
            A(f'buffer_store_dword v{ACC + 4 * t}, v{vVS}, {WS}, s{sA} offen offset:{1024 * t}{SC}')
        G['stamp']('vm stored')
        A(f's_cmp_eq_u32 s{sSTEP}, 63\ns_cbranch_scc1 L_end')
        OG, R, RM = MO, 116, XR + 16
        for j in range(4): A(f'v_mov_b32 v{R + j}, -1')
        slot_off(G, sA, sVMb, 15, 2)
        A(f'buffer_store_dword v{R}, v{vVS}, {WS}, s{sA} offen{SC}\nbuffer_store_dword v{R}, v{vVS}, {WS}, s{sA} offen offset:1024{SC}')
        slot_off(G, sA, sMLw, 14, 2)
        A(f'buffer_store_dword v{R}, v{vMS}, {WS}, s{sA} offen{SC}')
        slot_off(G, sA, sMRw, 18, 2)
        A(f'buffer_store_dwordx4 {vr(R, 4)}, v{vPS}, {WS}, s{sA} offen sc1\nbuffer_store_dwordx4 {vr(R, 4)}, v{vPS}, {WS}, s{sA} offen offset:1024 sc1')
        prep_ring()
        D = G['CFG']['dep']
        sMASK = sSRC
        slot_off(G, sA, sOb, 15)
        A(f's_add_u32 s{sB}, s{sA}, 4096')
        slot_off(G, sA2, sMLw, 14, 1); slot_off(G, sB2, sMRw, 18)
        ldO = lambda c: A(f'buffer_load_dwordx4 {vr(OG + 4 * c, 4)}, v{vL16}, {WS}, s{sA if c < 4 else sB} offen offset:{1024 * (c & 3)} sc1')
        def ldO_if(c):
            A(f's_bitcmp1_b32 s{sMASK}, {c}\ns_cselect_b64 exec, -1, 1'); ldO(c); A('s_mov_b64 exec, -1')
        smf = lambda c, ct: A(f'v_smfmac_f32_16x16x64_bf16 {vr(ACC + 4 * ct, 4)}, {vr(OG + 4 * c, 4)}, {ar((4 * c + ct) * 8, 8)}, v{vIDX}')
        def fold():
            for t in range(4): A(f'v_add_f32 v{R + t}, v{ACC + 4 * t}, v{ACC + 4 * t + 1}\nv_add_f32 v{R + 4 + t}, v{ACC + 4 * t + 2}, v{ACC + 4 * t + 3}')
        gdone, gbad, gok = A.new('Lg'), A.new('Lg'), A.new('Lg')
        A(f's_mov_b32 s{sMASK}, 0xff')
        dummy = lambda: A(f'buffer_load_dword v{T1}, v{vOOB}, {WS}, 0 offen')
        blk = [A.new('Lb') for _ in range(8)]; slo = [A.new('Ls') for _ in range(9)]; xit = [A.new('Lx') for _ in range(8)]
        light_wait(G, 8, ldO, lambda c: OG + 4 * c + 3, blk, lambda: [A(f'v_mov_b32 v{ACC + i}, 0') for i in range(16)])
        for c in range(8):
            A.lab(xit[c])
            A(f's_cmp_eq_u32 s{sMASK}, 0\ns_cbranch_scc1 {gdone}')
            A.lab(slo[c])
            dn = A.new('Ld')
            A(f's_bitcmp1_b32 s{sMASK}, {c}\ns_cbranch_scc0 {dn}\ns_waitcnt vmcnt(7)\nv_cmp_eq_u32 vcc, -1, v{OG + 4 * c + 3}\ns_cbranch_vccz {blk[c]}')
            ldO(c); A(f's_branch {slo[c + 1]}')
            A.lab(dn); dummy(); A(f's_branch {slo[c + 1]}')
        A.lab(slo[8])
        G['spin_check'](); A(f's_branch {slo[0]}')
        A.lab(gbad)
        G['spin_check']()
        for c in range(8): ldO(c)
        A('s_waitcnt vmcnt(0)')
        any_sentinel(A, OG, 32, T0)
        A(f's_cbranch_vccnz {gbad}')
        for i in range(16): A(f'v_mov_b32 v{ACC + i}, 0')
        for c in range(8):
            for ct in range(4): smf(c, ct)
        fold()
        A(f's_branch {gok}')
        for c in range(8):
            n = (c + 1) & 7
            A.lab(blk[c])
            smf(c, 0); dummy()
            smf(c, 1); A(f's_waitcnt vmcnt(7)\nv_cmp_eq_u32 vcc, -1, v{OG + 4 * n + 3}')
            smf(c, 2); A(f's_bitset0_b32 s{sMASK}, {c}\ns_bitcmp1_b32 s{sMASK}, {n}')
            smf(c, 3); A(f's_cselect_b64 vcc, vcc, -1\ns_cbranch_vccnz {xit[n]}')
        A(f's_branch {blk[0]}')
        A.lab(gdone)
        G['stamp']('Wo issued')
        A('s_nop 0')
        A(f'v_add_f32 v{R}, v{ACC}, v{ACC + 1}\nv_add_f32 v{R + 4}, v{ACC + 2}, v{ACC + 3}\nv_cmp_u_f32 vcc, v{R}, v{R + 4}')
        for t in range(1, 4): A(f'v_add_f32 v{R + t}, v{ACC + 4 * t}, v{ACC + 4 * t + 1}\nv_add_f32 v{R + 4 + t}, v{ACC + 4 * t + 2}, v{ACC + 4 * t + 3}')
        A(f's_cbranch_vccnz {gbad}')
        A.lab(gok)
        A(f'''buffer_store_dwordx4 {vr(R, 4)}, v{vPS}, {WS}, s{sB2} offen sc1
        buffer_store_dwordx4 {vr(R + 4, 4)}, v{vPS}, {WS}, s{sB2} offen offset:1024 sc1
        ds_write_b128 v{vXW}, {vr(R, 4)}
        ds_write_b128 v{vXW}, {vr(R + 4, 4)} offset:64
        s_xor_b32 s{sB2}, s{sB2}, 0x100000
        s_add_u32 s{sB}, s{sB2}, 4096''')
        G['stamp']('fold done')
        A('s_waitcnt lgkmcnt(0)\ns_barrier')
        G['stamp']('B2 passed')
        ldP = lambda: [A(f'buffer_load_dwordx2 {vr(RM + 2 * k, 2)}, v{vPL}, {WS}, s{sB2 if k < 2 else sB} offen offset:{2048 * (k & 1)} sc1') for k in range(4)]
        xd = G['CFG']['xd']
        if xd == 0: ldP()
        for k in range(4): A(f'ds_read_b64 {vr(R + 2 * k, 2)}, v{vXR} offset:{2304 * k}')
        for i in range(8): A(f'v_mov_b32 v{ACC + i}, 0')
        A(f'''s_waitcnt lgkmcnt(0)
        v_pk_add_f32 {vr(R, 2)}, {vr(R, 2)}, {vr(R + 2, 2)}
        v_pk_add_f32 {vr(R + 4, 2)}, {vr(R + 4, 2)}, {vr(R + 6, 2)}
        v_pk_add_f32 {vr(R, 2)}, {vr(R, 2)}, {vr(R + 4, 2)}''')
        if xd: A.fill(xd - 1); ldP()
        p1, p2, p3 = A.new('Lp'), A.new('Lp'), A.new('Lp')
        A.lab(p1)
        A(f'''s_waitcnt vmcnt(0)
        v_pk_add_f32 {vr(R + 2, 2)}, {vr(RM, 2)}, {vr(RM + 2, 2)}
        v_pk_add_f32 {vr(R + 4, 2)}, {vr(RM + 4, 2)}, {vr(RM + 6, 2)}
        v_pk_add_f32 {vr(R + 2, 2)}, {vr(R + 2, 2)}, {vr(R + 4, 2)}
        v_cmp_u_f32 vcc, v{R + 2}, v{R + 3}
        v_pk_add_f32 {vr(R + 2, 2)}, {vr(R + 2, 2)}, {vr(R, 2)}
        v_cvt_pk_bf16_f32 v{R + 2}, v{R + 2}, v{R + 3}
        s_cbranch_vccnz {p2}''')
        A.lab(p3)
        A(f'buffer_store_dword v{R + 2}, v{vMS}, {WS}, s{sA2} offen{SC}')
        G['stamp']('stored')
        G['stamp_flush'](T0)
        A(f's_add_u32 s{sSTEP}, s{sSTEP}, 1\ns_branch L_vo_top{mode}')
        A.lab(p2)
        any_sentinel(A, RM, 8, T0)
        A(f's_cbranch_vccz {p3}')
        G['spin_check'](); ldP(); A(f's_branch {p1}')
```

```python
from asmlib import *
from rec import Cnt, xlane, rt_stamp

vL16, T0, T1, vE, vO, vB = 1, 126, 127, 2, 3, 4
vXS, vXA, ACC, XF = 8, 16, 20, 36
E0 = 68
sSRC, sSEG, sEND, sA, sB, sM, sC, sLO = 60, 61, 62, 63, 64, 65, 66, 68

def load_weights(G, ptr, nbytes, stride, col_lo, col_hi, mode, rows, cols, first):
    A = G['A']; sW = G['sW']; sT0 = G['sT0']
    G['set_srd'](G['S_W'], ptr, nbytes)
    G['dma_voffsets'](vE, vO, stride, T0)
    if rows == 'nat':
        A(f'v_lshrrev_b32 v{T0}, 4, v0\nv_lshlrev_b32 v{T0}, 3, v{T0}\nv_bfe_u32 v{T1}, v0, 2, 2\nv_add_u32 v{T0}, v{T0}, v{T1}')
        A(f'v_lshrrev_b32 v{T1}, 5, v0\nv_lshlrev_b32 v{T1}, 1, v{T1}\nv_bfe_u32 v{vB}, v0, 3, 1\nv_or_b32 v{T1}, v{T1}, v{vB}')
        urow, usw = 4, 0
    else:
        A(f'v_lshrrev_b32 v{T0}, 2, v0\nv_bfe_u32 v{T1}, v0, 3, 1')
        urow, usw = 16, 2
    A(f'v_lshlrev_b32 v{T0}, 7, v{T0}')
    if mode == 'pair': A(f's_and_b32 s{sT0}, s{sW}, 1\ns_lshl_b32 s{sT0}, s{sT0}, 1\nv_xor_b32 v{T1}, s{sT0}, v{T1}')
    else: A(f'v_xor_b32 v{T1}, s{sW}, v{T1}')
    if cols == 'int':
        A(f'v_bfe_u32 v{vB}, v0, 1, 1\nv_xor_b32 v{T1}, v{T1}, v{vB}\nv_and_b32 v{vB}, 1, v0\nv_lshl_add_u32 v{T0}, v{vB}, 4, v{T0}')
    else:
        A(f'v_and_b32 v{vB}, 3, v0\nv_lshl_add_u32 v{T0}, v{vB}, 3, v{T0}')
    A(f'v_lshl_add_u32 v{T0}, v{T1}, 5, v{T0}')
    BS = E0
    for x in range(4):
        A(f'v_xor_b32 v{BS + x}, {32 * x}, v{T0}\nv_add_u32 v{BS + 4 + x}, 0x10000, v{BS + x}')
    loads = []
    for half in range(2):
        for hf in range(2):
            def issue(half=half, hf=hf):
                (col_lo, col_hi)[half](sSRC)
                A(f's_mul_i32 s{sT0}, s{sW}, {256 * stride}\ns_add_u32 s{sSRC}, s{sSRC}, s{sT0}')
                if hf: A(f's_add_u32 s{sSRC}, s{sSRC}, {128 * stride}')
                G['dma_half'](vE, vO, sSRC, hf, stride)
            def rd(half=half, hf=hf):
                skip = A.new('Lro')
                if mode == 'pair': A(f's_lshr_b32 s{sT0}, s{sW}, 1\ns_cmp_lg_u32 s{sT0}, {half}\ns_cbranch_scc1 {skip}')
                for p in ((0, 1) if mode == 'pair' else (half,)):
                    for Q in range(4):
                        for i in range(4):
                            for u in range(2):
                                x = (usw * u) ^ (p if (mode == 'pair' and cols == 'nat') else 0)
                                off = (Q & 1) * 32768 + hf * 16384 + i * 4096 + urow * u * 128 + (8 * p if cols == 'int' else 0)
                                A(f'ds_read_b64_tr_b16 {ar(128 * p + 4 * (8 * Q + 4 * hf + i) + 2 * u, 2)}, v{BS + 4 * (Q >> 1) + x} offset:{off}')
                A.lab(skip)
            loads.append((issue, rd))
    G['staged_load'](loads, first)

def x_addresses(G, linear):
    A = G['A']; sW = G['sW']; sT0 = G['sT0']
    for i in range(8):
        A(f's_lshl_b32 s{sT0}, s{sW}, 3\ns_add_u32 s{sT0}, s{sT0}, {i}')
        if linear: A(f's_lshl_b32 s{sT0}, s{sT0}, 11\nv_add_u32 v{vXS + i}, s{sT0}, v{vL16}')
        else: A(f's_and_b32 s{G["sT1"]}, s{sT0}, 15\nv_xor_b32 v{T0}, s{G["sT1"]}, v0\ns_lshl_b32 s{sT0}, s{sT0}, 11\nv_lshl_add_u32 v{vXS + i}, v{T0}, 4, s{sT0}')
    for kq in range(4):
        if linear: A(f'v_mov_b32 v{vXA + kq}, v{vL16}')
        else: A(f'''v_lshrrev_b32 v{T0}, 4, v0
        v_add_u32 v{T0}, {4 * kq}, v{T0}
        v_and_b32 v{T1}, 15, v0
        v_xor_b32 v{T0}, v{T0}, v{T1}
        v_lshlrev_b32 v{T0}, 4, v{T0}
        v_lshl_add_u32 v{vXA + kq}, v{T1}, 11, v{T0}''')

def x_dma_ops(G, srd, sc):
    ops = []
    for i in range(8):
        ops.append(f's_add_u32 m0, s{sM}, {2048 * i}\ns_nop 0\nbuffer_load_dwordx4 v{vXS + i}, {srd}, s{sA} offen{sc} lds')
        ops.append(f'buffer_load_dwordx4 v{vXS + i}, {srd}, s{sA} offen offset:1024{sc} lds')
    return ops

def p_loop(G, name, srd, base, sc, linear, w_is_a, nst, at_top, epilogue):
    A = G['A']; sW = G['sW']; sT0 = G['sT0']
    x_addresses(G, linear)
    A(f's_lshl_b32 s{sM}, s{sW}, 14\ns_lshl_b32 s{sA}, s{sSEG}, 16')
    if base: A(f's_add_u32 s{sA}, s{sA}, {base:#x}')
    for o in x_dma_ops(G, srd, sc): A(o)
    A('s_waitcnt vmcnt(0)')
    A.lab(name)
    A(f's_waitcnt vmcnt({nst})\ns_barrier')
    ds = Cnt(A, 'lgkmcnt')
    off = (lambda tt, ks: (32 * tt + ks) * 1024) if linear else (lambda tt, ks: tt * 32768 + (ks >> 2) * 256)
    rd = lambda ks, tt: ds.op(f'ds_read_b128 {vr(XF + 8 * (ks & 3) + 4 * tt, 4)}, v{vXA + (ks & 3)} offset:{off(tt, ks)}', ks)
    for ks in range(3): rd(ks, 0); rd(ks, 1)
    at_top()
    A(f'''s_xor_b32 s{sM}, s{sM}, 0x10000
    s_add_u32 s{sA}, s{sSEG}, 1
    s_sub_u32 s{sT0}, s{sEND}, 1
    s_min_u32 s{sA}, s{sA}, s{sT0}
    s_lshl_b32 s{sA}, s{sA}, 16''')
    if base: A(f's_add_u32 s{sA}, s{sA}, {base:#x}')
    dma = x_dma_ops(G, srd, sc)
    for ks in range(32):
        ds.wait(ks)
        for t, (tt, p) in enumerate(((0, 0), (0, 1), (1, 0), (1, 1))):
            d = vr(ACC + 8 * tt + 4 * p, 4); wv = ar(128 * p + 4 * ks, 4); xv = vr(XF + 8 * (ks & 3) + 4 * tt, 4)
            a, b = (wv, xv) if w_is_a else (xv, wv)
            A(f'v_mfma_f32_16x16x32_bf16 {d}, {a}, {b}, {d if ks else 0}')
            if ks + 3 < 32 and t < 2: rd(ks + 3, t)
            if t == 2 and ks < 16: A(dma[ks])
    for kq in range(4): A(f'v_xor_b32 v{vXA + kq}, 0x10000, v{vXA + kq}')
    epilogue()
    A(f's_add_u32 s{sSEG}, s{sSEG}, 1\ns_cmp_lt_u32 s{sSEG}, s{sEND}\ns_cbranch_scc1 {name}')

def start(G, label):
    A = G['A']
    A.lab(label)
    A(f'v_lshlrev_b32 v{vL16}, 4, v0')
    G['init_flag'](T0)

def signal(G, val, wave=0):
    A = G['A']; skip = A.new('Lsg')
    A(f's_cmp_lg_u32 s{G["sW"]}, {wave}\ns_cbranch_scc1 {skip}')
    G['flag_store'](val, T0)
    A.lab(skip)

def wait_flags(G, vaddr, need, sleep=2):
    A = G['A']; lp, ok = A.new('Lwf'), A.new('Lwf')
    A.lab(lp)
    A(f'buffer_load_dword v{T0}, v{vaddr}, {G["SRD"](G["S_WS"])}, 0 offen sc1\ns_waitcnt vmcnt(0)\nv_cmp_gt_u32 vcc, {need}, v{T0}\ns_cbranch_vccz {ok}\ns_sleep {sleep}')
    G['spin_check'](); A(f's_branch {lp}')
    A.lab(ok)

def pack(A, dst, srcs):
    for i in range(0, len(srcs), 2): A(f'v_cvt_pk_bf16_f32 v{dst + i // 2}, v{srcs[i]}, v{srcs[i + 1]}')

def head_cols(G):
    lo = lambda d: G['A'](f's_lshl_b32 s{d}, s{G["sI"]}, 8')
    hi = lambda d: G['A'](f's_lshl_b32 s{d}, s{G["sI"]}, 8\ns_add_u32 s{d}, s{d}, 128')
    return lo, hi

def gen_kv(G, label, ptr, dst, is_k):
    A = G['A']; WS = G['SRD'](G['S_WS']); sW, sI, sT0 = G['sW'], G['sI'], G['sT0']
    start(G, label)
    load_weights(G, ptr, 1024 * 8192, 8192, *head_cols(G), 'pair', 'nat', 'nat', lambda: G['arrive'](T0))
    rt_stamp(G, 0)
    A(f's_mov_b32 s{sSEG}, 0\ns_mov_b32 s{sEND}, 64')
    def top():
        A(f's_max_u32 s{sB}, s{sSEG}, 1\ns_sub_u32 s{sB}, s{sB}, 1')
        signal(G, f's{sB}')
    def epi():
        A(f's_lshl_b32 s{sB}, s{sSEG}, 5\ns_add_u32 s{sB}, s{sB}, s{sI}\ns_lshl_b32 s{sB}, s{sB}, 13\ns_lshl_b32 s{sT0}, s{sW}, {10 if is_k else 11}\ns_add_u32 s{sB}, s{sB}, s{sT0}\ns_add_u32 s{sB}, s{sB}, {dst:#x}')
        for x in range(2):
            if is_k: pack(A, E0 + 4 * x, [ACC + 8 * x + i for i in range(8)])
            else: pack(A, E0 + 4 * x, [ACC + 4 * x + i for i in range(4)] + [ACC + 8 + 4 * x + i for i in range(4)])
            A(f'buffer_store_dwordx4 {vr(E0 + 4 * x, 4)}, v{vL16}, {WS}, s{sB} offen sc1')
            if x == 0: A(f's_add_u32 s{sB}, s{sB}, {4096 if is_k else 1024}')
    p_loop(G, label + '_loop', G['SRD'](G['S_X']), 0, '', False, is_k, 2, top, epi)
    A('s_waitcnt vmcnt(0)\ns_barrier')
    signal(G, 64)
    rt_stamp(G, 1)
    A('s_branch L_end')

def gen_pk(G): gen_kv(G, 'L_pk', G['P_WK'], G['KX'], True)
def gen_pv(G): gen_kv(G, 'L_pv', G['P_WV'], G['VX'], False)

def gen_qa(G):
    A = G['A']; WS = G['SRD'](G['S_WS']); sW, sI, sT0, sT1 = G['sW'], G['sI'], G['sT0'], G['sT1']
    QXB, KXB, VXB = 131072, 139264, 147456
    vQW, vQR, vKR, vVR, vFL, vKM, vVM = 128, 129, 130, 131, 132, 133, 134
    BIAS, Q, KXR, VXR, KMR, VMR, VMM, S, O, P = 136, 144, 160, 192, 208, 224, 228, 68, 84, 100
    start(G, 'L_qa')
    load_weights(G, G['P_WQ'], 1024 * 8192, 8192, *head_cols(G), 'pair', 'nat', 'nat', lambda: G['arrive'](T0))
    rt_stamp(G, 0)
    A(f'''s_mov_b32 s{sC}, 0x3e0293ee
    s_mov_b32 s{sLO}, -1
    s_mov_b32 s{sLO + 1}, 0
    s_lshl_b32 s{sT0}, s{sW}, 10
    s_add_u32 s{sT0}, s{sT0}, {QXB}
    v_add_u32 v{vQW}, s{sT0}, v{vL16}
    s_and_b32 s{sT1}, s{sW}, 1
    s_lshl_b32 s{sT0}, s{sT1}, 12
    s_add_u32 s{sT0}, s{sT0}, {QXB}
    v_add_u32 v{vQR}, s{sT0}, v{vL16}
    v_add_u32 v{vKR}, {KXB}, v{vL16}
    s_lshr_b32 s{sT0}, s{sW}, 1
    s_lshl_b32 s{sT0}, s{sT0}, 10
    v_lshl_add_u32 v{vVM}, v0, 3, s{sT0}
    s_lshl_b32 s{sT0}, s{sT0}, 2
    s_add_u32 s{sT0}, s{sT0}, {VXB}
    v_add_u32 v{vVR}, s{sT0}, v{vL16}
    v_lshrrev_b32 v{T0}, 5, v0
    v_lshlrev_b32 v{T0}, 8, v{T0}
    v_and_b32 v{T1}, 7, v0
    v_lshl_add_u32 v{T0}, v{T1}, 5, v{T0}
    v_and_b32 v{T1}, 16, v0
    v_add_u32 v{vKM}, v{T0}, v{T1}
    s_and_b32 s{sT0}, s{sI}, 15
    s_lshl_b32 s{sT0}, s{sT0}, 3
    s_lshr_b32 s{sB}, s{sI}, 4
    s_add_u32 s{sT0}, s{sT0}, s{sB}
    s_lshl_b32 s{sT0}, s{sT0}, 7
    v_mov_b32 v{vFL}, s{sT0}
    s_lshl_b32 s{sT1}, s{sT1}, 4
    v_and_b32 v{T0}, 15, v0
    v_add_u32 v{T0}, s{sT1}, v{T0}
    v_lshrrev_b32 v{T1}, 4, v0
    v_lshlrev_b32 v{T1}, 2, v{T1}
    v_sub_u32 v{T0}, v{T0}, v{T1}
    v_mov_b32 v{T1}, 0xf149f2ca''')
    for t in range(2):
        for j in range(4): A(f'v_cmp_gt_i32 vcc, {16 * t + j}, v{T0}\nv_cndmask_b32 v{BIAS + 4 * t + j}, 0, v{T1}, vcc')
    G['wait_all_arrived'](E0)
    A(f'v_and_b32 v{T1}, 1, v0\nv_lshlrev_b32 v{T1}, 7, v{T1}\ns_lshl_b32 s{sT0}, s{sI}, 10\ns_add_u32 s{sT0}, s{sT0}, 256\nv_add_u32 v{T1}, s{sT0}, v{T1}')
    wait_flags(G, T1, 1)
    A(f's_mov_b32 s{sSEG}, 0\ns_mov_b32 s{sEND}, 64')
    def top():
        A(f'''s_lshl_b32 s{sB}, s{sSEG}, 5
        s_add_u32 s{sB}, s{sB}, s{sI}
        s_lshl_b32 s{sB}, s{sB}, 13
        s_lshl_b32 s{sT0}, s{sW}, 11
        s_add_u32 s{sB}, s{sB}, s{sT0}
        s_add_u32 m0, s{sT0}, {KXB}
        s_add_u32 s{sB}, s{sB}, {G['KX']:#x}
        buffer_load_dwordx4 v{vL16}, {WS}, s{sB} offen sc1 lds
        buffer_load_dwordx4 v{vL16}, {WS}, s{sB} offen offset:1024 sc1 lds
        s_add_u32 m0, s{sT0}, {VXB}
        s_add_u32 s{sB}, s{sB}, {G['VX'] - G['KX']:#x}
        buffer_load_dwordx4 v{vL16}, {WS}, s{sB} offen sc1 lds
        buffer_load_dwordx4 v{vL16}, {WS}, s{sB} offen offset:1024 sc1 lds''')
    def epi():
        for tt in range(2):
            pack(A, E0 + 4 * tt, [ACC + 8 * tt + i for i in range(8)])
            A(f'ds_write_b128 v{vQW}, {vr(E0 + 4 * tt, 4)} offset:{4096 * tt}')
        A('s_waitcnt vmcnt(16) lgkmcnt(0)\ns_barrier')
        signal(G, f's{sSEG}', 3)
        ds = Cnt(A, 'lgkmcnt')
        for ks in range(4):
            ds.op(f'ds_read_b128 {vr(Q + 4 * ks, 4)}, v{vQR} offset:{1024 * ks}', ks)
            for t in range(2): ds.op(f'ds_read_b128 {vr(KXR + 16 * t + 4 * ks, 4)}, v{vKR} offset:{4096 * t + 1024 * ks}', ks)
        A(f's_add_u32 s{sB}, s{sSEG}, 1')
        wait_flags(G, vFL, f's{sB}', 1)
        A(f'''s_lshl_b32 s{sB}, s{sSEG}, 5
        s_add_u32 s{sB}, s{sB}, s{sI}
        s_lshl_b32 s{sB}, s{sB}, 11
        s_add_u32 s{sT0}, s{sB}, {G['VMP']:#x}
        s_add_u32 s{sB}, s{sB}, {G['KM']:#x}''')
        for ks in range(4): A(f'buffer_load_dwordx4 {vr(KMR + 4 * ks, 4)}, v{vKM}, {WS}, s{sB} offen offset:{512 * ks} sc1')
        for x in range(2): A(f'buffer_load_dwordx2 {vr(VMR + 2 * x, 2)}, v{vVM}, {WS}, s{sT0} offen offset:{512 * x} sc1')
        A('s_waitcnt lgkmcnt(0)')
        for i in range(4): A(f'ds_read_b128 {vr(VXR + 4 * i, 4)}, v{vVR} offset:{1024 * i}')
        for ks in range(4):
            for t in range(2):
                A(f'v_mfma_f32_16x16x32_bf16 {vr(S + 4 * t, 4)}, {vr(KXR + 16 * t + 4 * ks, 4)}, {vr(Q + 4 * ks, 4)}, {vr((S if ks else BIAS) + 4 * t, 4)}')
        A('s_waitcnt vmcnt(0)')
        for ks in range(4):
            A(f'v_mfma_f32_16x16x32_bf16 {vr(S + 8, 4)}, {vr(KMR + 4 * ks, 4)}, {vr(Q + 4 * ks, 4)}, {vr(S + 8, 4) if ks else 0}')
        for x in range(2):
            for j in range(2):
                A(f'v_cndmask_b32 v{VMM + 4 * x + j}, 0, v{VMR + 2 * x + j}, s[{sLO}:{sLO + 1}]\nv_cndmask_b32 v{VMM + 4 * x + 2 + j}, v{VMR + 2 * x + j}, 0, s[{sLO}:{sLO + 1}]')
        m_, t_, l_, l2 = S + 12, S + 13, S + 14, S + 15
        A(f'v_max3_f32 v{m_}, v{S}, v{S + 1}, v{S + 2}')
        for i in range(3, 11, 2): A(f'v_max3_f32 v{m_}, v{m_}, v{S + i}, v{S + i + 1}')
        A(f'v_max_f32 v{m_}, v{m_}, v{S + 11}')
        xlane(A, 'v_max_f32', m_, t_)
        A(f'v_mul_f32 v{m_}, s{sC}, v{m_}')
        for i in range(12): A(f'v_fma_f32 v{S + i}, v{S + i}, s{sC}, -v{m_}')
        for i in range(12): A(f'v_exp_f32 v{S + i}, v{S + i}')
        pack(A, P, [S + i for i in range(12)])
        A('s_waitcnt lgkmcnt(0)')
        for i in range(4): A(f'v_mfma_f32_16x16x32_bf16 {vr(O + 4 * i, 4)}, {vr(VXR + 4 * i, 4)}, {vr(P, 4)}, 0')
        for i in range(4): A(f'v_mfma_f32_16x16x16_bf16 {vr(O + 4 * i, 4)}, {vr(VMM + 2 * i, 2)}, {vr(P + 4, 2)}, {vr(O + 4 * i, 4)}')
        A(f'v_add_f32 v{l2}, v{S + 8}, v{S + 9}\nv_add_f32 v{l_}, v{S}, v{S + 1}\nv_add_f32 v{l2}, v{l2}, v{S + 10}\nv_add_f32 v{l2}, v{l2}, v{S + 11}')
        for i in range(2, 8): A(f'v_add_f32 v{l_}, v{l_}, v{S + i}')
        A(f'v_fma_f32 v{l_}, v{l2}, 0.5, v{l_}')
        xlane(A, 'v_add_f32', l_, t_)
        A(f'''v_rcp_f32 v{l_}, v{l_}
        s_lshl_b32 s{sB}, s{sSEG}, 1
        s_and_b32 s{sT0}, s{sW}, 1
        s_add_u32 s{sB}, s{sB}, s{sT0}
        s_lshl_b32 s{sB}, s{sB}, 5
        s_add_u32 s{sB}, s{sB}, s{sI}
        s_lshl_b32 s{sB}, s{sB}, 1
        s_lshr_b32 s{sT0}, s{sW}, 1
        s_add_u32 s{sB}, s{sB}, s{sT0}
        s_lshl_b32 s{sB}, s{sB}, 11
        s_add_u32 s{sB}, s{sB}, {G['OX']:#x}''')
        for i in range(16): A(f'v_mul_f32 v{O + i}, v{O + i}, v{l_}')
        pack(A, P, [O + i for i in range(16)])
        for x in range(2): A(f'buffer_store_dwordx4 {vr(P + 4 * x, 4)}, v{vL16}, {WS}, s{sB} offen offset:{1024 * x} sc1')
    p_loop(G, 'L_qa_loop', G['SRD'](G['S_X']), 0, '', False, True, 2, top, epi)
    A('s_waitcnt vmcnt(0)\ns_barrier')
    signal(G, 64, 3)
    rt_stamp(G, 1)
    A('s_branch L_end')

def gen_g3(G):
    A = G['A']; WS = G['SRD'](G['S_WS']); sW, sI, sG, sT0, sT1, sT2 = G['sW'], G['sI'], G['sG'], G['sT0'], G['sT1'], G['sT2']
    vFL, vRW, vRR, vOUT, R, OD = 8, 9, 10, 11, 28, 128
    start(G, 'L_g3')
    G['set_srd'](G['S_W'], G['P_WO'], 4096 * 2048)
    A(f'''v_lshrrev_b32 v{T0}, 2, v0
    v_and_b32 v{T1}, 3, v0
    v_lshlrev_b32 v{vE}, 11, v{T0}
    v_lshl_add_u32 v{vE}, v{T1}, 4, v{vE}
    v_lshlrev_b32 v{vB}, 6, v{T0}
    v_lshl_add_u32 v{vB}, v{T1}, 3, v{vB}
    s_lshl_b32 s{sT0}, s{sW}, 15
    v_add_u32 v{vB}, s{sT0}, v{vB}''')
    loads = []
    for ld in range(4):
        def issue(ld=ld):
            lp = A.new('Lg3d')
            A(f'''s_lshl_b32 s{sT1}, s{sW}, 21
            s_lshl_b32 s{sT0}, s{sI}, 6
            s_add_u32 s{sT1}, s{sT1}, s{sT0}
            s_add_u32 s{sT1}, s{sT1}, {ld * 256 * 2048}
            s_lshl_b32 s{sT0}, s{sW}, 15
            s_add_u32 s{sT0}, s{sT0}, {(ld & 1) * 16384}
            s_mov_b32 s{sT2}, 16''')
            A.lab(lp)
            A(f'''s_mov_b32 m0, s{sT0}
            s_add_u32 s{sT0}, s{sT0}, 1024
            buffer_load_dwordx4 v{vE}, {G['SRD'](G['S_W'])}, s{sT1} offen lds
            s_add_u32 s{sT1}, s{sT1}, {16 * 2048}
            s_sub_u32 s{sT2}, s{sT2}, 1
            s_cmp_lg_u32 s{sT2}, 0
            s_cbranch_scc1 {lp}''')
        def rd(ld=ld):
            for i in range(8):
                for p in range(2):
                    for u in range(2):
                        A(f'ds_read_b64_tr_b16 {ar(128 * p + 4 * (8 * ld + i) + 2 * u, 2)}, v{vB} offset:{(ld & 1) * 16384 + (32 * i + 16 * u) * 64 + 32 * p}')
        loads.append((issue, rd))
    G['staged_load'](loads, lambda: G['arrive'](T0))
    rt_stamp(G, 0)
    A(f'''v_and_b32 v{T0}, 7, v0
    s_lshl_b32 s{sT0}, s{sW}, 13
    s_add_u32 s{sT0}, s{sT0}, 512
    v_lshl_add_u32 v{vFL}, v{T0}, 10, s{sT0}
    v_and_b32 v{T0}, 15, v0
    v_lshrrev_b32 v{T1}, 4, v0
    v_mul_u32_u24 v{vRW}, 144, v{T0}
    v_lshl_add_u32 v{vRW}, v{T1}, 4, v{vRW}
    s_mul_i32 s{sT0}, s{sW}, 2304
    v_add_u32 v{vRW}, s{sT0}, v{vRW}
    s_lshl_b32 s{sT0}, s{sW}, 2
    v_add_u32 v{T1}, s{sT0}, v{T1}
    v_mul_u32_u24 v{vRR}, 144, v{T1}
    v_lshl_add_u32 v{vRR}, v{T0}, 3, v{vRR}
    v_lshlrev_b32 v{vOUT}, 12, v{T1}
    v_lshl_add_u32 v{vOUT}, v{T0}, 2, v{vOUT}
    s_sub_u32 s{sC}, s{sG}, 6
    s_mov_b32 s{sSEG}, 0''')
    G['wait_all_arrived'](E0)
    A.lab('L_g3_loop')
    A(f's_add_u32 s{sB}, s{sSEG}, 1')
    wait_flags(G, vFL, f's{sB}', 1)
    A(f'''s_lshl_b32 s{sA}, s{sSEG}, 1
    s_add_u32 s{sA}, s{sA}, s{sC}
    s_lshl_b32 s{sB}, s{sA}, 16
    s_lshl_b32 s{sA}, s{sA}, 2
    s_add_u32 s{sA}, s{sA}, s{sW}
    s_lshl_b32 s{sA}, s{sA}, 15
    s_add_u32 s{sA}, s{sA}, {G['OX']:#x}
    s_lshl_b32 s{sT0}, s{sI}, 6
    s_add_u32 s{sB}, s{sB}, s{sT0}''')
    for ks in range(32):
        A(f'buffer_load_dwordx4 {vr(OD + 4 * ks, 4)}, v{vL16}, {WS}, s{sA} offen offset:{1024 * (ks & 3)} sc1')
        if ks & 3 == 3 and ks < 31: A(f's_add_u32 s{sA}, s{sA}, 4096')
    for ks in range(32):
        A(f's_waitcnt vmcnt({31 - ks})')
        for p in range(2):
            A(f'v_mfma_f32_16x16x32_bf16 {vr(ACC + 4 * p, 4)}, {ar(128 * p + 4 * ks, 4)}, {vr(OD + 4 * ks, 4)}, {vr(ACC + 4 * p, 4) if ks else 0}')
    A(f'''ds_write_b128 v{vRW}, {vr(ACC, 4)}
    ds_write_b128 v{vRW}, {vr(ACC + 4, 4)} offset:64
    s_waitcnt lgkmcnt(0)
    s_barrier''')
    for k in range(4): A(f'ds_read_b64 {vr(R + 2 * k, 2)}, v{vRR} offset:{2304 * k}')
    A(f'''v_xor_b32 v{vRW}, 0x4000, v{vRW}
    v_xor_b32 v{vRR}, 0x4000, v{vRR}
    s_waitcnt lgkmcnt(0)
    v_pk_add_f32 {vr(R, 2)}, {vr(R, 2)}, {vr(R + 2, 2)}
    v_pk_add_f32 {vr(R + 4, 2)}, {vr(R + 4, 2)}, {vr(R + 6, 2)}
    v_pk_add_f32 {vr(R, 2)}, {vr(R, 2)}, {vr(R + 4, 2)}
    v_cvt_pk_bf16_f32 v{R}, v{R}, v{R + 1}
    buffer_store_dword v{R}, v{vOUT}, {G['SRD'](G['S_OUT'])}, s{sB} offen
    s_add_u32 s{sSEG}, s{sSEG}, 1
    s_cmp_lt_u32 s{sSEG}, 64
    s_cbranch_scc1 L_g3_loop''')
    rt_stamp(G, 1)
    A('s_branch L_end')

def phi(A, G, src, tmp, n):
    for i in range(n): A(f'v_mul_f32 v{tmp + i}, s{sC}, v{src[i]}')
    for i in range(n): A(f'v_exp_f32 v{tmp + i}, v{tmp + i}')
    for i in range(n):
        A(f'v_cmp_lt_f32 vcc, 0, v{src[i]}\nv_add_f32 v{src[i]}, 1.0, v{src[i]}\nv_cndmask_b32 v{src[i]}, v{tmp + i}, v{src[i]}, vcc\nv_add_f32 v{src[i]}, s{sLO}, v{src[i]}')

def gen_b(G):
    A = G['A']; WS = G['SRD'](G['S_WS']); XS = G['SRD'](G['S_X']); sW, sI, sT0, sT1 = G['sW'], G['sI'], G['sT0'], G['sT1']
    XB = 131072
    KVA, PK, VV, VP, ONE, vEW, vER, vFL, vOUT = 128, 140, 144, 148, 152, 156, 157, 158, 159
    start(G, 'L_b')
    G['set_srd'](G['S_X'], G['P_BX'], 2048 * 2048)
    A(f's_mov_b32 s{sC}, 0x3fb8aa3b\ns_mov_b32 s{sLO}, 0x358637bd')
    lo = lambda d: A(f's_and_b32 s{d}, s{sI}, 15\ns_lshl_b32 s{d}, s{d}, 7\ns_add_u32 s{d}, s{d}, 2048')
    hi = lambda d: A(f's_and_b32 s{d}, s{sI}, 15\ns_lshl_b32 s{d}, s{d}, 7\ns_add_u32 s{d}, s{d}, 4096')
    load_weights(G, G['P_WQKV'], 1024 * 6144, 6144, lo, hi, 'split', 'nat', 'nat', lambda: G['arrive'](T0))
    rt_stamp(G, 0)
    for i in range(12): A(f'v_mov_b32 v{KVA + i}, 0')
    for i in range(4): A(f'v_mov_b32 v{ONE + i}, 0x3f803f80')
    A(f'''s_lshl_b32 s{sT0}, s{sW}, 10
    s_add_u32 s{sT0}, s{sT0}, {XB}
    v_add_u32 v{vEW}, s{sT0}, v{vL16}
    v_xor_b32 v{vER}, 1024, v{vEW}
    s_lshr_b32 s{sSEG}, s{sI}, 4
    s_lshl_b32 s{sSEG}, s{sSEG}, 5
    s_add_u32 s{sEND}, s{sSEG}, 32''')
    def epi1():
        ks_ = [ACC + i for i in range(4)] + [ACC + 8 + i for i in range(4)]
        pack(A, VV, [ACC + 4 + i for i in range(4)] + [ACC + 12 + i for i in range(4)])
        A(f'ds_write_b128 v{vEW}, {vr(VV, 4)}')
        phi(A, G, ks_, E0, 8)
        pack(A, PK, ks_)
        A(f's_waitcnt lgkmcnt(0)\ns_barrier\nds_read_b128 {vr(VP, 4)}, v{vER}')
        A(f'v_mfma_f32_16x16x32_bf16 {vr(KVA, 4)}, {vr(PK, 4)}, {vr(VV, 4)}, {vr(KVA, 4)}')
        A(f'v_mfma_f32_16x16x32_bf16 {vr(KVA + 8, 4)}, {vr(PK, 4)}, {vr(ONE, 4)}, {vr(KVA + 8, 4)}')
        A(f's_waitcnt lgkmcnt(0)\nv_mfma_f32_16x16x32_bf16 {vr(KVA + 4, 4)}, {vr(PK, 4)}, {vr(VP, 4)}, {vr(KVA + 4, 4)}')
    p_loop(G, 'L_b1', XS, 0, '', False, False, 0, lambda: None, epi1)
    A(f'''s_lshl_b32 s{sB}, s{sI}, 1
    s_lshr_b32 s{sT0}, s{sW}, 1
    s_add_u32 s{sB}, s{sB}, s{sT0}
    s_mul_i32 s{sB}, s{sB}, 6144
    s_and_b32 s{sT0}, s{sW}, 1
    s_lshl_b32 s{sT1}, s{sT0}, 10
    s_add_u32 s{sB}, s{sB}, s{sT1}
    s_add_u32 s{sB}, s{sB}, {G['KVP']:#x}
    s_lshl_b32 s{sT0}, s{sT0}, 11
    s_add_u32 s{sA}, s{sB}, s{sT0}
    buffer_store_dwordx4 {vr(KVA, 4)}, v{vL16}, {WS}, s{sA} offen sc1
    s_xor_b32 s{sT0}, s{sT0}, 2048
    s_add_u32 s{sA}, s{sB}, s{sT0}
    buffer_store_dwordx4 {vr(KVA + 4, 4)}, v{vL16}, {WS}, s{sA} offen sc1
    s_add_u32 s{sA}, s{sB}, 4096
    buffer_store_dwordx4 {vr(KVA + 8, 4)}, v{vL16}, {WS}, s{sA} offen sc1
    s_waitcnt vmcnt(0)
    s_barrier''')
    signal(G, 1)
    rt_stamp(G, 1)
    lo = lambda d: A(f's_and_b32 s{d}, s{sI}, 7\ns_lshl_b32 s{d}, s{d}, 8')
    hi = lambda d: A(f's_and_b32 s{d}, s{sI}, 7\ns_lshl_b32 s{d}, s{d}, 8\ns_add_u32 s{d}, s{d}, 128')
    load_weights(G, G['P_WQKV'], 1024 * 6144, 6144, lo, hi, 'pair', 'nat', 'nat', lambda: None)
    G['wait_all_arrived'](E0)
    sH = sSRC
    A(f'''s_and_b32 s{sH}, s{sI}, 7
    s_lshl_b32 s{sH}, s{sH}, 2
    s_add_u32 s{sH}, s{sH}, s{sW}
    s_lshr_b32 s{sT0}, s{sH}, 1
    s_lshl_b32 s{sT0}, s{sT0}, 10
    s_add_u32 s{sT0}, s{sT0}, 640
    v_and_b32 v{T0}, 1, v0
    v_lshl_add_u32 v{vFL}, v{T0}, 14, s{sT0}''')
    wait_flags(G, vFL, 1)
    LD = 160
    A(f's_mul_i32 s{sA}, s{sH}, 6144\ns_add_u32 s{sA}, s{sA}, {G["KVP"]:#x}')
    for rh in range(2):
        for b in range(6):
            A(f'buffer_load_dwordx4 {vr(LD + 24 * rh + 4 * b, 4)}, v{vL16}, {WS}, s{sA} offen offset:{1024 * (b & 3)} sc1')
            if b == 3: A(f's_add_u32 s{sA}, s{sA}, 4096')
        if rh == 0: A(f's_add_u32 s{sA}, s{sA}, {32 * 6144 - 4096}')
    A('s_waitcnt vmcnt(0)')
    for i in range(24): A(f'v_add_f32 v{LD + i}, v{LD + i}, v{LD + 24 + i}')
    pack(A, KVA, [LD + i for i in range(24)])
    def seg_range():
        A(f's_lshr_b32 s{sSEG}, s{sI}, 3\ns_lshl_b32 s{sSEG}, s{sSEG}, 4\ns_add_u32 s{sEND}, s{sSEG}, 16')
    seg_range()
    def epi2():
        N = LD
        phi(A, G, [ACC + i for i in range(16)], E0, 16)
        pack(A, PK, [ACC + i for i in range(16)])
        for tt in range(2):
            for b in range(3): A(f'v_mfma_f32_16x16x32_bf16 {vr(N + 12 * tt + 4 * b, 4)}, {vr(KVA + 4 * b, 4)}, {vr(PK + 4 * tt, 4)}, 0')
        A(f's_lshl_b32 s{sB}, s{sSEG}, 6\ns_add_u32 s{sB}, s{sB}, s{sH}\ns_lshl_b32 s{sB}, s{sB}, 10\ns_add_u32 s{sB}, s{sB}, {G["OB"]:#x}')
        for tt in range(2):
            d = N + 12 * tt + 8
            A(f'v_add_f32 v{d}, s{sLO}, v{d}\nv_rcp_f32 v{d}, v{d}')
            for i in range(8): A(f'v_mul_f32 v{N + 12 * tt + i}, v{N + 12 * tt + i}, v{d}')
            pack(A, E0 + 4 * tt, [N + 12 * tt + i for i in range(8)])
            A(f'buffer_store_dwordx4 {vr(E0 + 4 * tt, 4)}, v{vL16}, {WS}, s{sB} offen sc1')
            if tt == 0: A(f's_add_u32 s{sB}, s{sB}, 32768')
    p_loop(G, 'L_b2', XS, 0, '', False, True, 2, lambda: None, epi2)
    A('s_waitcnt vmcnt(0)\ns_barrier')
    signal(G, 2)
    rt_stamp(G, 2)
    load_weights(G, G['P_BWO'], 1024 * 2048, 2048, lo, hi, 'pair', 'sig', 'int', lambda: None)
    A(f'''s_and_b32 s{sT0}, s{sI}, 24
    s_lshl_b32 s{sT0}, s{sT0}, 10
    s_add_u32 s{sT0}, s{sT0}, 640
    v_and_b32 v{T0}, 7, v0
    v_lshl_add_u32 v{vFL}, v{T0}, 10, s{sT0}
    s_and_b32 s{sT0}, s{sI}, 7
    s_lshl_b32 s{sT0}, s{sT0}, 2
    s_add_u32 s{sT0}, s{sT0}, s{sW}
    s_lshl_b32 s{sT0}, s{sT0}, 6
    s_add_u32 s{sT0}, s{sT0}, 2048
    v_and_b32 v{T0}, 15, v0
    v_lshlrev_b32 v{T0}, 12, v{T0}
    v_and_b32 v{T1}, 48, v0
    v_add3_u32 v{vOUT}, v{T0}, v{T1}, s{sT0}''')
    wait_flags(G, vFL, 2)
    seg_range()
    def epi3():
        A(f's_lshl_b32 s{sB}, s{sSEG}, 17')
        for tt in range(2):
            pack(A, E0 + 4 * tt, [ACC + 8 * tt + i for i in range(8)])
            A(f'buffer_store_dwordx4 {vr(E0 + 4 * tt, 4)}, v{vOUT}, {G["SRD"](G["S_OUT"])}, s{sB} offen')
            if tt == 0: A(f's_add_u32 s{sB}, s{sB}, 65536')
    p_loop(G, 'L_b3', WS, G['OB'], ' sc1', True, True, 2, lambda: None, epi3)
    rt_stamp(G, 3)
    A('s_branch L_end')
```

```python
import sys
from asmlib import *

KNAME = 'concat_heads__memory_aug_recurrent_mem_tr__linear_attn_block__prompt_kernel'
CFG = dict(roles='QVKPAGB', stamp=0, par=0, force_slow=0, verbose=0, sw=0, trig=0, rot=1, fill=1, fw=6, dep=4, xd=0, np=2)
for x in sys.argv[2:]:
    k, v = x.split('='); CFG[k] = v if k == 'roles' else int(v)

FLAGS = 0
STAMPS = 0x10000
ML = 0x40000
MR = 0x200000
OR_ = 0xA0000
VMR = 0xE0000
KX = 0x1000000
VX = 0x2000000
OX = 0x3000000
KM = 0x4000000
VMP = 0x4400000
KVP = 0x4800000
OB = 0x5000000
WS_BYTES = 0x10000000

S_WS, S_W, S_X, S_OUT, S_DBG = 4, 8, 12, 16, 20
P_AX, P_MEM0, P_WQ, P_WK, P_WV, P_WO, P_BX, P_WQKV, P_BWO, P_OUT, P_DBG, P_WSP = 24, 26, 28, 30, 32, 34, 38, 40, 42, 44, 46, 48
sW, sG, sI, sSTEP, sTMO = 50, 51, 52, 54, 55
sT0, sT1, sT2, sT3 = 56, 57, 58, 59
SRD = lambda b: sr(b, 4)
LDS_BYTES = 163840

A = Asm()
if CFG['fill']: A.vfill = 'v_mov_b32 v0, v0'

def set_srd(b, ptr, nbytes):
    A(f's_mov_b32 s{b}, s{ptr}\ns_mov_b32 s{b+1}, s{ptr+1}\ns_mov_b32 s{b+2}, {nbytes:#x}\ns_mov_b32 s{b+3}, 0x20000')

def spin_check():
    A(f's_add_u32 s{sTMO}, s{sTMO}, 1\ns_bitcmp1_b32 s{sTMO}, 21\ns_cbranch_scc1 L_abort')

NST = [0]
def stamp(name):
    if CFG['stamp'] < 2: return
    i = NST[0]; NST[0] += 1
    assert i < 11
    print(f'stamp {i}: {name}', file=sys.stderr)
    A(f's_memtime s[{78 + 2 * i}:{79 + 2 * i}]')

def stamp_flush(vtmp):
    if CFG['stamp'] < 2: return
    n = NST[0]; NST[0] = 0
    A(f's_waitcnt lgkmcnt(0)\ns_memtime s[100:101]\ns_memrealtime s[{sT2}:{sT3}]\ns_waitcnt lgkmcnt(0)')
    A(f's_lshl_b32 s{sT0}, s2, 2\ns_add_u32 s{sT0}, s{sT0}, s{sW}\ns_lshl_b32 s{sT0}, s{sT0}, 6\ns_add_u32 s{sT0}, s{sT0}, s{sSTEP}\ns_lshl_b32 s{sT0}, s{sT0}, 6\ns_add_u32 s{sT0}, s{sT0}, {0x800000:#x}')
    A(f'v_mov_b32 v{vtmp}, {n}')
    for i in range(n): A(f'v_writelane_b32 v{vtmp}, s{78 + 2 * i}, {i + 1}')
    A(f'v_writelane_b32 v{vtmp}, s100, 14\nv_writelane_b32 v{vtmp}, s{sT2}, 15')
    A(f'v_lshlrev_b32 v{vtmp + 1}, 2, v0\ns_mov_b64 exec, 0xffff\nbuffer_store_dword v{vtmp}, v{vtmp + 1}, {SRD(S_WS)}, s{sT0} offen\ns_mov_b64 exec, -1')

def entry():
    A.lab(KNAME)
    A(f'''s_cmp_ge_u32 s2, 256
    s_cbranch_scc1 L_end
    s_load_dwordx16 s[24:39], s[0:1], 0
    s_load_dwordx8 s[40:47], s[0:1], 64
    s_load_dwordx2 s[48:49], s[0:1], 96
    v_lshrrev_b32 v1, 6, v0
    v_and_b32 v0, 63, v0
    s_and_b32 s{sG}, s2, 7
    v_readfirstlane_b32 s{sW}, v1
    s_lshr_b32 s{sI}, s2, 3
    s_mov_b32 s{sTMO}, 0
    s_mov_b32 s{sSTEP}, 0
    s_waitcnt lgkmcnt(0)''')
    set_srd(S_WS, P_WSP, WS_BYTES)
    set_srd(S_DBG, P_DBG, 256)
    set_srd(S_OUT, P_OUT, 2048 * 2048 * 2)
    set_srd(S_X, P_AX, 2048 * 1024 * 2)
    set_srd(S_W, P_WQ, 1024 * 4096 * 2)
    if CFG['stamp']:
        A(f's_memrealtime s[36:37]\ns_waitcnt lgkmcnt(0)')
    A(f'''s_cmp_lt_u32 s{sG}, 2
    s_cbranch_scc0 L_not_rec
    s_cmp_lt_u32 s{sI}, 16
    s_cbranch_scc1 L_qk
    s_branch L_vo''')
    A.lab('L_not_rec')
    A(f'''s_cmp_eq_u32 s{sG}, 2
    s_cbranch_scc1 L_pk
    s_cmp_eq_u32 s{sG}, 3
    s_cbranch_scc1 L_pv
    s_cmp_eq_u32 s{sG}, 4
    s_cbranch_scc1 L_qa
    s_cmp_eq_u32 s{sG}, 5
    s_cbranch_scc1 L_b
    s_branch L_g3''')

def flag_store(val_sgpr_or_imm, vtmp):
    A(f'v_mov_b32 v{vtmp}, {val_sgpr_or_imm}\ns_lshl_b32 s{sT3}, s2, 7\ns_mov_b64 exec, 1\nbuffer_store_dword v{vtmp}, off, {SRD(S_WS)}, s{sT3} sc1\ns_mov_b64 exec, -1')

def init_flag(vtmp, val=0):
    skip = A.new('Lif')
    A(f's_cmp_lg_u32 s{sW}, 0\ns_cbranch_scc1 {skip}')
    flag_store(val, vtmp)
    A.lab(skip)

def arrive(vtmp):
    skip = A.new('Lar')
    A(f's_cmp_lg_u32 s{sW}, 0\ns_cbranch_scc1 {skip}')
    A(f'v_mov_b32 v{vtmp}, 1\ns_mov_b64 exec, 1\nbuffer_atomic_add v{vtmp}, off, {SRD(S_DBG)}, 0 sc1\ns_mov_b64 exec, -1')
    A.lab(skip)

def wait_all_arrived(vt):
    lp, ok = A.new('Lwa'), A.new('Lwo')
    A.lab(lp)
    A(f'''buffer_load_dwordx4 {vr(vt, 4)}, off, {SRD(S_DBG)}, 0 sc1
    s_waitcnt vmcnt(0)
    v_readfirstlane_b32 s{sT0}, v{vt}
    s_cmp_ge_u32 s{sT0}, 256
    s_cbranch_scc1 {ok}
    s_sleep 4''')
    spin_check()
    A(f's_branch {lp}')
    A.lab(ok)

def disabled_role(label):
    A.lab(label)
    init_flag(2, 64)
    A('s_waitcnt vmcnt(0)\ns_barrier')
    arrive(2)
    A('s_branch L_end')

def dma_voffsets(vE, vO, rowstride, vt):
    sh = rowstride.bit_length() - 1
    pw = (1 << sh) == rowstride
    A(f'v_lshrrev_b32 v{vt}, 3, v0')
    if pw: A(f'v_lshlrev_b32 v{vE}, {sh}, v{vt}')
    else: A(f'v_mul_u32_u24 v{vE}, {rowstride}, v{vt}')
    A(f'''v_and_b32 v{vt}, 2, v{vt}
    v_xor_b32 v{vt}, v{vt}, v0
    v_and_b32 v{vt}, 7, v{vt}
    v_lshlrev_b32 v{vt}, 4, v{vt}
    v_xor_b32 v{vO}, 64, v{vt}
    v_add_u32 v{vO}, v{vO}, v{vE}
    v_add_u32 v{vE}, v{vt}, v{vE}''')

def dma_half(vE, vO, sSrc, hf, rowstride):
    lp = A.new('Ldma')
    A(f'''s_lshl_b32 s{sT0}, s{sW}, 15
    s_add_u32 s{sT0}, s{sT0}, {hf * 16384}
    s_sub_u32 s{sT1}, s{sSrc}, {8 * rowstride}
    s_mov_b32 s{sT2}, 4''')
    A.lab(lp)
    for v in (vE, vE, vO, vO):
        A(f'''s_mov_b32 m0, s{sT0}
        s_add_u32 s{sT1}, s{sT1}, {8 * rowstride}
        buffer_load_dwordx4 v{v}, {SRD(S_W)}, s{sT1} offen lds
        s_add_u32 s{sT0}, s{sT0}, 1024''')
    A(f'''s_sub_u32 s{sT2}, s{sT2}, 1
    s_cmp_lg_u32 s{sT2}, 0
    s_cbranch_scc1 {lp}''')

def staged_load(loads, after_first):
    loads[0][0](); loads[1][0]()
    n = len(loads)
    for i in range(n):
        if loads[i][1] is None: break
        A('s_waitcnt vmcnt(16)' if i + 1 < n else 's_waitcnt vmcnt(0)')
        A('s_barrier')
        if i == 0: after_first()
        loads[i][1]()
        A('s_waitcnt lgkmcnt(0)\ns_barrier')
        if i + 2 < n: loads[i + 2][0]()
    A('s_waitcnt vmcnt(0)\ns_barrier')

from rec import gen_qk, gen_vo

def main():
    entry()
    R = CFG['roles']
    G = globals()
    if 'Q' in R: gen_qk(G)
    else: disabled_role('L_qk')
    if 'V' in R: gen_vo(G)
    else: disabled_role('L_vo')
    import shadow
    for ch, lab, fn in (('K', 'L_pk', 'gen_pk'), ('P', 'L_pv', 'gen_pv'), ('A', 'L_qa', 'gen_qa'), ('B', 'L_b', 'gen_b'), ('G', 'L_g3', 'gen_g3')):
        if ch in R: getattr(shadow, fn)(G)
        else: disabled_role(lab)
    A.lab('L_abort')
    A(f'''s_mov_b64 exec, 1
    s_lshl_b32 s{sT0}, s2, 8
    s_or_b32 s{sT0}, s{sT0}, s{sSTEP}
    s_or_b32 s{sT0}, s{sT0}, 0x40000000
    v_mov_b32 v2, s{sT0}
    buffer_store_dword v2, off, {SRD(S_DBG)}, 0 offset:16 sc1''')
    A.lab('L_end')
    A('s_endpgm')
    A.pad(CFG['verbose'])
    hdr = open('concat_heads__memory_aug_recurrent_mem_tr__linear_attn_block__prompt.s.ref').read().split('; Override launch')[0]
    out = hdr + f'; @launch grid=(256,1,1) block=(256,1,1) lds={LDS_BYTES}\n'
    out += f'.amdgcn_target "amdgcn-amd-amdhsa--gfx950"\n.text\n.globl {KNAME}\n.p2align 8\n.type {KNAME},@function\n'
    out += A.text()
    out += f'''.section .rodata,"a"
.p2align 6
.amdhsa_kernel {KNAME}
  .amdhsa_next_free_vgpr 512
  .amdhsa_next_free_sgpr 102
  .amdhsa_accum_offset 256
  .amdhsa_group_segment_fixed_size 0
  .amdhsa_kernarg_size 104
  .amdhsa_user_sgpr_count 2
  .amdhsa_user_sgpr_kernarg_segment_ptr 1
  .amdhsa_system_sgpr_workgroup_id_x 1
  .amdhsa_float_denorm_mode_32 3
.end_amdhsa_kernel
'''
    open(sys.argv[1], 'w').write(out)

if __name__ == '__main__':
    main()
```
